```python
import torch

def _softmax(x, axis=-1):
    return torch.softmax(x, dim=axis)
def _gelu(x):
    return torch.nn.functional.gelu(x, approximate="tanh")
def _silu(x):
    return torch.nn.functional.silu(x)
def _sigmoid(x):
    return torch.sigmoid(x)
def _layernorm(x, axis=-1, eps=1e-5):
    m = x.mean(dim=axis, keepdim=True)
    v = x.var(dim=axis, keepdim=True, unbiased=False)
    return (x - m) / torch.sqrt(v + eps)
def _scatter_add(tgt, idx, src, axis=0):
    return tgt.clone().index_add_(axis, idx, src)
def _segment_sum(src, seg, n):
    out = torch.zeros((n,) + src.shape[1:], dtype=src.dtype)
    return out.index_add_(0, seg, src)
def _pad(x, pw):
    flat = tuple(v for pair in reversed(pw) for v in pair)
    return torch.nn.functional.pad(x, flat)

kernel_name = 'interleave_layers__mha_block__glu_gated_geglu__prompt'

def setup_inputs():

    _w = (lambda a: (lambda t: t.to(torch.bfloat16) if t.is_floating_point() else t)(torch.as_tensor(a)))
    def _A_setup():
        B, S, D, H = 1, 2048, 640, 32
        return {
            "x": _w((lambda *s: torch.randn(*s, dtype=torch.bfloat16) * 0.05)(B, S, D)),
            "wqkv": _w((lambda *s: torch.randn(*s, dtype=torch.bfloat16) * 0.05)(D, 3 * D)),
            "wo": _w((lambda *s: torch.randn(*s, dtype=torch.bfloat16) * 0.05)(D, D)),
        }
    _A_in = _A_setup()

    def _B_setup():
        B, S, Dm, Df = 1, 2048, 640, 1728
        return {
            "x": _w((lambda *s: torch.randn(*s, dtype=torch.bfloat16) * 0.05)(B, S, Dm)),
            "w_gate": _w((lambda *s: torch.randn(*s, dtype=torch.bfloat16) * 0.8)(Dm, Df) * (Dm ** -0.5)),
            "w_up": _w((lambda *s: torch.randn(*s, dtype=torch.bfloat16) * 0.8)(Dm, Df) * (Dm ** -0.5)),
            "w_down": _w((lambda *s: torch.randn(*s, dtype=torch.bfloat16) * 0.8)(Df, Dm) * (Df ** -0.5)),
        }
    _B_in = _B_setup()

    return {
        "A_x": _A_in["x"],
        "A_wqkv": _A_in["wqkv"],
        "A_wo": _A_in["wo"],
        "B_x": _B_in["x"],
        "B_w_gate": _B_in["w_gate"],
        "B_w_up": _B_in["w_up"],
        "B_w_down": _B_in["w_down"],
    }

def reference(A_x, A_wqkv, A_wo, B_x, B_w_gate, B_w_up, B_w_down):
    def _A_ref(x, wqkv, wo):
        B, S, D = x.shape
        H = 32
        Dh = D // H
        qkv = (lambda x, *d: x.permute(*d))((x @ wqkv).reshape(B, S, 3, H, Dh), 2, 0, 3, 1, 4)
        q, k, v = qkv[0], qkv[1], qkv[2]
        scores = torch.einsum("bhqd,bhkd->bhqk", q, k) * (Dh ** -0.5)
        p = _softmax(scores, axis=-1)
        o = torch.einsum("bhqk,bhkd->bhqd", p, v)
        return (lambda x, *d: x.permute(*d))(o, 0, 2, 1, 3).reshape(B, S, D) @ wo

    def _B_ref(x, w_gate, w_up, w_down):
        g = torch.einsum("bsd,df->bsf", x, w_gate)
        u = torch.einsum("bsd,df->bsf", x, w_up)
        h = _gelu(g) * u
        return torch.einsum("bsf,fd->bsd", h, w_down)

    x = A_x
    x = x + _A_ref(_layernorm(x, axis=-1), A_wqkv, A_wo)
    x = x + _B_ref(_layernorm(x, axis=-1), B_w_gate, B_w_up, B_w_down)
    x = x + _A_ref(_layernorm(x, axis=-1), A_wqkv, A_wo)
    x = x + _B_ref(_layernorm(x, axis=-1), B_w_gate, B_w_up, B_w_down)
    return x
```

```python
from common import *
from gemm import PTR

NWG_ATTN = 256
CH = 8
NCH = 64 // CH
CHB = CH * 4096
NBUF = 3
THR = '0x41000000'


def attn_kernel():
    k = Kern('attn_kernel')
    L_end = k.newlabel('end')
    k('s_cmp_ge_u32 s2, %d' % NWG_ATTN)
    k('s_cbranch_scc1 %s' % L_end)
    k('s_load_dwordx4 s[80:83], s[0:1], 64')
    k('s_and_b32 s3, s2, 31')
    k('s_lshr_b32 s4, s2, 5')
    va = VAlloc(1)
    vl = va.get()
    k('v_and_b32 v%d, 63, v0' % vl)
    k('v_lshrrev_b32 v2, 6, v0')
    va.get()
    k('s_nop 0')
    k('v_readfirstlane_b32 s5, v2')
    k('s_waitcnt lgkmcnt(0)')
    mk_srd(k, 8, PTR('ws'), QF_OFF, 12 << 20)
    mk_srd(k, 12, PTR('ws'), O_OFF, S_TOK * D * 2)
    vo16 = va.get()
    k('v_lshlrev_b32 v%d, 4, v%d' % (vo16, vl))
    k('s_lshl_b32 s20, s3, 17')
    q = va.get(8, 4)
    k('s_lshl_b32 s21, s4, 3')
    k('s_add_u32 s21, s21, s5')
    k('s_lshl_b32 s22, s21, 11')
    k('s_add_u32 s22, s22, s20')
    k('buffer_load_dwordx4 %s, v%d, s[8:11], s22 offen' % (vr(q, 4), vo16))
    k('buffer_load_dwordx4 %s, v%d, s[8:11], s22 offen offset:1024' % (vr(q + 4, 4), vo16))
    k('s_lshl_b32 s23, s5, 11')
    k('s_add_u32 s24, s20, s23')
    k('s_add_u32 s25, s24, 0x800000')
    k('s_add_u32 s24, s24, 0x400000')
    k('s_mov_b32 s26, 0')

    def dma():
        k('s_add_u32 m0, s26, s23')
        k('s_nop 0')
        k('buffer_load_dwordx4 v%d, s[8:11], s24 offen lds' % vo16)
        k('buffer_load_dwordx4 v%d, s[8:11], s24 offen offset:1024 lds' % vo16)
        k('s_add_u32 m0, m0, %d' % (CH * 2048))
        k('s_nop 0')
        k('buffer_load_dwordx4 v%d, s[8:11], s25 offen lds' % vo16)
        k('buffer_load_dwordx4 v%d, s[8:11], s25 offen offset:1024 lds' % vo16)
        k('s_add_u32 s24, s24, %d' % (CH * 2048))
        k('s_add_u32 s25, s25, %d' % (CH * 2048))
        k('s_add_u32 s26, s26, %d' % CHB)
        k('s_cmp_eq_u32 s26, %d' % (NBUF * CHB))
        k('s_cselect_b32 s26, 0, s26')

    dma()
    dma()
    kf = va.get(8, 4)
    vf = va.get(8, 4)
    s_ = [va.get(16, 4), va.get(16, 4)]
    p_ = va.get(8, 4)
    o_ = va.get(16, 4)
    nm = va.get(16, 4)
    tm = va.get(6)
    vcur = va.get()
    vnxt = va.get()
    for i in range(16):
        k('v_mov_b32 v%d, 0' % (o_ + i))
    k('s_mov_b32 s27, 0')
    k('s_mov_b32 s28, %d' % CHB)
    k('v_mov_b32 v%d, v%d' % (vcur, vo16))
    k('v_add_u32 v%d, s28, v%d' % (vnxt, vo16))

    def rd_k(tile_in_chunk):
        if tile_in_chunk < CH:
            a, off = vcur, tile_in_chunk * 2048
        else:
            a, off = vnxt, (tile_in_chunk - CH) * 2048
        return ['ds_read_b128 %s, v%d offset:%d' % (vr(kf, 4), a, off),
                'ds_read_b128 %s, v%d offset:%d' % (vr(kf + 4, 4), a, off + 1024)]

    def rd_v(tile_in_chunk):
        off = CH * 2048 + tile_in_chunk * 2048
        return ['ds_read_b128 %s, v%d offset:%d' % (vr(vf, 4), vcur, off),
                'ds_read_b128 %s, v%d offset:%d' % (vr(vf + 4, 4), vcur, off + 1024)]

    def mf_s(dst, cinit):
        return ['v_mfma_f32_32x32x16_bf16 %s, %s, %s, %s' % (vr(dst, 16), vr(kf, 4), vr(q, 4), cinit),
                'v_mfma_f32_32x32x16_bf16 %s, %s, %s, %s' % (vr(dst, 16), vr(kf + 4, 4), vr(q + 4, 4), vr(dst, 16))]

    def mf_pv():
        return ['v_mfma_f32_32x32x16_bf16 %s, %s, %s, %s' % (vr(o_, 16), vr(vf, 4), vr(p_, 4), vr(o_, 16)),
                'v_mfma_f32_32x32x16_bf16 %s, %s, %s, %s' % (vr(o_, 16), vr(vf + 4, 4), vr(p_ + 4, 4), vr(o_, 16))]

    def max_ops(s):
        ops = []
        for i in range(5):
            ops.append('v_max3_f32 v%d, v%d, v%d, v%d' % (tm + i, s + 3 * i, s + 3 * i + 1, s + 3 * i + 2))
        ops.append('v_max3_f32 v%d, v%d, v%d, v%d' % (tm, tm, tm + 1, tm + 2))
        ops.append('v_max3_f32 v%d, v%d, v%d, v%d' % (tm + 3, tm + 3, tm + 4, s + 15))
        ops.append('v_max_f32 v%d, v%d, v%d' % (tm, tm, tm + 3))
        return ops

    def rowmax():
        k('v_mov_b32 v%d, v%d' % (tm + 1, tm))
        k('s_nop 1')
        k('v_permlane32_swap_b32 v%d, v%d' % (tm, tm + 1))
        k('v_max_f32 v%d, v%d, v%d' % (tm, tm, tm + 1))

    def exp_ops(s):
        ops = ['v_exp_f32 v%d, v%d' % (s + i, s + i) for i in range(16)]
        return ops

    def cvt_ops(s):
        return ['v_cvt_pk_bf16_f32 v%d, v%d, v%d' % (p_ + i, s + 2 * i, s + 2 * i + 1) for i in range(8)]

    k('s_waitcnt vmcnt(4)')
    k('s_barrier')
    emit_list(k, rd_k(0))
    k('s_waitcnt lgkmcnt(0)')
    emit_list(k, mf_s(s_[0], '0'))
    emit_list(k, rd_k(1))
    k('s_nop 7')
    k('s_nop 7')
    emit_list(k, max_ops(s_[0]))
    rowmax()
    for i in range(16):
        k('v_sub_f32 v%d, 0, v%d' % (nm + i, tm))
    for i in range(16):
        k('v_sub_f32 v%d, v%d, v%d' % (s_[0] + i, s_[0] + i, tm))
    k('s_waitcnt lgkmcnt(0)')
    k('s_mov_b32 s29, %d' % NCH)
    slow = []
    L_loop = k.newlabel('chunk')
    k.label(L_loop)
    k('s_waitcnt vmcnt(0)')
    k('s_barrier')
    L_nodma = k.newlabel('nodma')
    k('s_cmp_le_u32 s29, 2')
    k('s_cbranch_scc1 %s' % L_nodma)
    dma()
    k.label(L_nodma)
    for i in range(CH):
        cur, nxt = s_[i & 1], s_[1 - (i & 1)]
        first = False
        L_slow = k.newlabel('slow')
        L_back = k.newlabel('back')
        pv = mf_pv()
        sm = mf_s(nxt, vr(nm, 16))
        mx = max_ops(cur)
        k(pv[0])
        emit_list(k, mx[:4])
        k(pv[1])
        emit_list(k, mx[4:])
        k(sm[0])
        k('v_cmp_lt_f32 vcc, %s, v%d' % (THR, tm))
        k(sm[1])
        emit_list(k, rd_k(i + 2))
        emit_list(k, rd_v(i))
        k('s_cbranch_vccnz %s' % L_slow)
        k.label(L_back)
        emit_list(k, exp_ops(cur))
        k('s_nop 0')
        emit_list(k, cvt_ops(cur))
        k('s_waitcnt lgkmcnt(0)')
        k('s_nop 0')
        slow.append((L_slow, L_back, cur, nxt))
    k('s_mov_b32 s27, s28')
    k('s_add_u32 s28, s28, %d' % CHB)
    k('s_cmp_eq_u32 s28, %d' % (NBUF * CHB))
    k('s_cselect_b32 s28, 0, s28')
    k('v_add_u32 v%d, s27, v%d' % (vcur, vo16))
    k('v_add_u32 v%d, s28, v%d' % (vnxt, vo16))
    k('s_sub_u32 s29, s29, 1')
    k('s_cmp_lg_u32 s29, 0')
    k('s_cbranch_scc1 %s' % L_loop)
    emit_list(k, mf_pv())
    k('s_nop 7')
    k('s_nop 7')
    k('v_mov_b32 v%d, v%d' % (tm, o_ + 8))
    k('v_mov_b32 v%d, v%d' % (tm + 1, o_ + 8))
    k('s_nop 1')
    k('v_permlane32_swap_b32 v%d, v%d' % (tm, tm + 1))
    k('v_rcp_f32 v%d, v%d' % (tm + 1, tm + 1))
    k('s_nop 0')
    for i in range(12):
        k('v_mul_f32 v%d, v%d, v%d' % (o_ + i, o_ + i, tm + 1))
    for g in range(3):
        k('v_cvt_pk_bf16_f32 v%d, v%d, v%d' % (p_ + 2 * g, o_ + 4 * g, o_ + 4 * g + 1))
        k('v_cvt_pk_bf16_f32 v%d, v%d, v%d' % (p_ + 2 * g + 1, o_ + 4 * g + 2, o_ + 4 * g + 3))
    k('s_lshl_b32 s22, s21, 5')
    k('v_and_b32 v%d, 31, v%d' % (tm, vl))
    k('v_add_u32 v%d, s22, v%d' % (tm, tm))
    k('v_mul_u32_u24 v%d, 1280, v%d' % (tm, tm))
    k('v_lshrrev_b32 v%d, 5, v%d' % (tm + 1, vl))
    k('v_lshl_add_u32 v%d, v%d, 3, v%d' % (tm, tm + 1, tm))
    k('s_mul_i32 s22, s3, 40')
    k('v_add_u32 v%d, s22, v%d' % (tm, tm))
    k('buffer_store_dwordx2 %s, v%d, s[12:15], 0 offen' % (vr(p_, 2), tm))
    k('buffer_store_dwordx2 %s, v%d, s[12:15], 0 offen offset:16' % (vr(p_ + 2, 2), tm))
    k('v_mov_b32 v%d, 0x7ffffff0' % (tm + 2))
    k('v_cmp_gt_u32 vcc, 32, v%d' % vl)
    k('s_nop 1')
    k('v_cndmask_b32 v%d, v%d, v%d, vcc' % (tm, tm + 2, tm))
    k('buffer_store_dwordx2 %s, v%d, s[12:15], 0 offen offset:32' % (vr(p_ + 4, 2), tm))
    k('s_branch %s' % L_end)
    for (L_slow, L_back, cur, nxt) in slow:
        k.label(L_slow)
        k('s_nop 7')
        k('s_nop 7')
        rowmax()
        k('v_max_f32 v%d, 0, v%d' % (tm, tm))
        k('v_sub_f32 v%d, 0, v%d' % (tm + 1, tm))
        k('v_exp_f32 v%d, v%d' % (tm + 1, tm + 1))
        for i in range(16):
            k('v_sub_f32 v%d, v%d, v%d' % (nm + i, nm + i, tm))
        for i in range(16):
            k('v_sub_f32 v%d, v%d, v%d' % (cur + i, cur + i, tm))
        for i in range(16):
            k('v_sub_f32 v%d, v%d, v%d' % (nxt + i, nxt + i, tm))
        for i in range(16):
            k('v_mul_f32 v%d, v%d, v%d' % (o_ + i, o_ + i, tm + 1))
        k('s_branch %s' % L_back)
    k.label(L_end)
    k('s_endpgm')
    idx = k.lines.index(L_loop + ':')
    init = ['    v_mov_b32 v%d, 0' % (p_ + i) for i in range(8)] + \
           ['    v_mov_b32 v%d, 0' % (vf + i) for i in range(8)]
    k.lines[idx:idx] = init
    return k, va.n, 0, NBUF * CHB, NWG_ATTN
```

```python
S_TOK = 2048
D = 640
DF = 1728
H = 32
DH = 20

CS_OFF = 0x40000
ST_OFF = 0x8000
KM_OFF = 0x30000
QF_OFF = 0x100000
KF_OFF = 0x500000
VF_OFF = 0x900000
O_OFF = 0xD00000
X1_OFF = 0x1000000
X2_OFF = 0x1300000
H_OFF = 0x1600000
WOP_OFF = 0x2000000
WDP_OFF = 0x2100000
WS_SIZE = 268435456

KARG = {'A_x': 0, 'A_wqkv': 8, 'A_wo': 16, 'B_x': 24, 'w_gate': 32, 'w_up': 40,
        'w_down': 48, 'out': 56, 'dbg': 64, 'ws': 72}
KSIZE = {'A_x': S_TOK * D * 2, 'A_wqkv': D * 3 * D * 2, 'A_wo': D * D * 2,
         'w_gate': D * DF * 2, 'w_up': D * DF * 2, 'w_down': DF * D * 2,
         'out': S_TOK * D * 2}


class Kern:
    def __init__(self, name):
        self.name = name
        self.lines = []
        self.nlab = 0
        self.max_v = 0
        self.max_a = 0

    def __call__(self, s):
        for ln in s.strip('\n').split('\n'):
            ln = ln.strip()
            if ln:
                self.lines.append('    ' + ln)

    def label(self, l):
        self.lines.append(l + ':')

    def newlabel(self, base='L'):
        self.nlab += 1
        return '%s_%s_%d' % (base, self.name, self.nlab)

    def comment(self, s):
        self.lines.append('    ; ' + s)


class VAlloc:
    def __init__(self, start=1):
        self.n = start

    def get(self, cnt=1, align=1):
        self.n = (self.n + align - 1) // align * align
        r = self.n
        self.n += cnt
        return r


def vr(base, cnt):
    return 'v[%d:%d]' % (base, base + cnt - 1) if cnt > 1 else 'v%d' % base


def ar(base, cnt):
    return 'a[%d:%d]' % (base, base + cnt - 1) if cnt > 1 else 'a%d' % base


def sr(base, cnt):
    return 's[%d:%d]' % (base, base + cnt - 1) if cnt > 1 else 's%d' % base


def load_ptr(k, sdst, name):
    k('s_load_dwordx2 %s, s[0:1], %d' % (sr(sdst, 2), KARG[name]))


def mk_srd(k, sd, sptr, off, size):
    if off:
        k('s_add_u32 s%d, s%d, 0x%x' % (sd, sptr, off))
        k('s_addc_u32 s%d, s%d, 0' % (sd + 1, sptr + 1))
        k('s_and_b32 s%d, s%d, 0xffff' % (sd + 1, sd + 1))
    else:
        k('s_mov_b32 s%d, s%d' % (sd, sptr))
        k('s_and_b32 s%d, s%d, 0xffff' % (sd + 1, sptr + 1))
    k('s_mov_b32 s%d, 0x%x' % (sd + 2, size))
    k('s_mov_b32 s%d, 0x20000' % (sd + 3))


def interleave(a, b):
    out = []
    na, nb = len(a), len(b)
    if na == 0:
        return list(b)
    j = 0
    for i, x in enumerate(a):
        out.append(x)
        tgt = (i + 1) * nb // na
        while j < tgt:
            out.append(b[j])
            j += 1
    while j < nb:
        out.append(b[j])
        j += 1
    return out


def emit_list(k, lst):
    for x in lst:
        if isinstance(x, (list, tuple)):
            for y in x:
                k(y)
        else:
            k(x)


def finish(k, nvgpr, nagpr, nsgpr=102):
    name = k.name
    body = ['.globl %s' % name, '.p2align 8', '.type %s,@function' % name, name + ':'] + k.lines
    acc_off = (nvgpr + 3) // 4 * 4
    if acc_off < 4:
        acc_off = 4
    nfv = acc_off + nagpr if nagpr else nvgpr
    desc = ['.amdhsa_kernel %s' % name,
            '  .amdhsa_next_free_vgpr %d' % nfv,
            '  .amdhsa_next_free_sgpr %d' % nsgpr,
            '  .amdhsa_accum_offset %d' % acc_off,
            '  .amdhsa_group_segment_fixed_size 0',
            '  .amdhsa_kernarg_size 80',
            '  .amdhsa_user_sgpr_count 2',
            '  .amdhsa_user_sgpr_kernarg_segment_ptr 1',
            '  .amdhsa_system_sgpr_workgroup_id_x 1',
            '.end_amdhsa_kernel']
    return '\n'.join(body), '\n'.join(desc)
```

```python
from common import *

QSCALE = (DH ** -0.5) * 1.4426950408889634


def fbits(x):
    import struct
    return '0x%08x' % struct.unpack('<I', struct.pack('<f', x))[0]


def PTR(name):
    return 64 + KARG[name] // 4


class Ctx:
    pass


def gemm_kernel(name, *, TM, TN, WM, WN, K, NB, mtiles, ntiles, xsrc, XS, wsrcs, WS, N,
                epi, ln, cs_base=(), resid=None, dst=None, acc_agpr=False, want_stats=True):
    k = Kern(name)
    c = Ctx()
    nmat = len(wsrcs)
    WTM, WTN = TM // WM, TN // WN
    ntb, nnb = WTM // 16, WTN // 16
    npair = (nnb + 1) // 2
    S = K // 32
    XB = TM * 64
    WB = 8192 + 32
    STAGE = XB + nmat * WB
    AUX = 0
    SB = 2048
    assert TM * 8 + nmat * TN * 4 <= SB
    LDS = SB + NB * STAGE
    NWG = mtiles * ntiles
    PX = TM // 64
    DPW = PX + 2 * nmat
    c.__dict__.update(locals())

    L_end = k.newlabel('end')
    k('s_cmp_ge_u32 s2, %d' % NWG)
    k('s_cbranch_scc1 %s' % L_end)
    k('s_load_dwordx16 s[64:79], s[0:1], 0')
    k('s_load_dwordx4 s[80:83], s[0:1], 64')
    k('s_and_b32 s3, s2, %d' % (mtiles - 1))
    k('s_lshr_b32 s4, s2, %d' % (mtiles.bit_length() - 1))
    va = VAlloc(1)
    vl = va.get()
    k('v_and_b32 v%d, 63, v0' % vl)
    k('v_lshrrev_b32 v2, 6, v0')
    va.get()
    k('s_nop 0')
    k('v_readfirstlane_b32 s5, v2')
    k('s_waitcnt lgkmcnt(0)')

    def srd_of(sd, src):
        if src[0] == 'ptr':
            mk_srd(k, sd, PTR(src[1]), 0, KSIZE[src[1]])
        else:
            mk_srd(k, sd, PTR('ws'), src[1], src[2])
    srd_of(8, xsrc)
    for m, w in enumerate(wsrcs):
        mk_srd(k, 12 + 4 * m, PTR(w), 0, KSIZE[w])
    mk_srd(k, 20, PTR('ws'), 0, 0x100000)
    if dst is not None:
        srd_of(24, dst)
    if resid is not None:
        srd_of(28, resid)
    k('s_lshr_b32 s6, s5, %d' % (WN.bit_length() - 1))
    k('s_and_b32 s7, s5, %d' % (WN - 1))
    k('s_mul_i32 s56, s3, %d' % TM)
    k('s_mul_i32 s57, s4, %d' % TN)

    vt = va.get(16, 4)
    vcs = va.get()
    if ln:
        vta = va.get()
        k('v_add_u32 v%d, s56, v0' % vta)
        k('v_lshlrev_b32 v%d, 6, v%d' % (vta, vta))
        k('v_add_u32 v%d, 0x%x, v%d' % (vta, ST_OFF, vta))
        for i in range(4):
            k('buffer_load_dwordx4 %s, v%d, s[20:23], 0 offen offset:%d' % (vr(vt + 4 * i, 4), vta, 16 * i))
        vci = va.get()
        k('v_add_u32 v%d, s57, v0' % vci)
        if nmat == 2:
            k('v_mov_b32 v%d, %d' % (vcs, cs_base[0]))
            k('v_mov_b32 v%d, %d' % (vta, cs_base[1] - TN))
            k('v_cmp_gt_u32 vcc, %d, v0' % TN)
            k('s_nop 1')
            k('v_cndmask_b32 v%d, v%d, v%d, vcc' % (vcs, vta, vcs))
            k('v_add_u32 v%d, v%d, v%d' % (vci, vci, vcs))
        else:
            k('v_add_u32 v%d, %d, v%d' % (vci, cs_base[0], vci))
        k('v_lshlrev_b32 v%d, 2, v%d' % (vci, vci))
        k('buffer_load_dword v%d, v%d, s[20:23], 0 offen' % (vcs, vci))
    naux = 5 if ln else 0

    c.vres = None
    if resid is not None:
        c.vres = va.get(ntb * npair * 4, 4)
        vra = va.get()
        vrb = va.get()
        k('s_mul_i32 s58, s6, %d' % WTM)
        k('s_add_u32 s58, s58, s56')
        k('v_and_b32 v%d, 15, v%d' % (vra, vl))
        k('v_add_u32 v%d, s58, v%d' % (vra, vra))
        k('v_mul_u32_u24 v%d, %d, v%d' % (vra, N * 2, vra))
        k('v_lshrrev_b32 v%d, 4, v%d' % (vrb, vl))
        k('v_lshl_add_u32 v%d, v%d, 4, v%d' % (vra, vrb, vra))
        k('s_mul_i32 s58, s7, %d' % WTN)
        k('s_add_u32 s58, s58, s57')
        k('s_lshl_b32 s58, s58, 1')
        k('v_add_u32 v%d, s58, v%d' % (vra, vra))
        c.vra = vra
        for tb in range(ntb):
            for p in range(npair):
                reg = c.vres + (tb * npair + p) * 4
                full = 2 * p + 1 < nnb
                off = tb * 16 * N * 2 + p * 64
                assert off < 4096
                if full:
                    k('buffer_load_dwordx4 %s, v%d, s[28:31], 0 offen offset:%d' % (vr(reg, 4), vra, off))
                else:
                    k('v_lshlrev_b32 v%d, 3, v%d' % (vrb, vrb))
                    k('v_sub_u32 v%d, v%d, v%d' % (vrb, vra, vrb))
                    k('buffer_load_dwordx2 %s, v%d, s[28:31], 0 offen offset:%d' % (vr(reg, 2), vrb, off))
                    k('v_lshrrev_b32 v%d, 4, v%d' % (vrb, vl))
                naux += 1

    vxd = va.get()
    vwd = va.get()
    t1 = vt + 0
    ta = va.get()
    tb_ = va.get()
    k('v_lshrrev_b32 v%d, 4, v%d' % (ta, vl))
    k('v_sub_u32 v%d, 0, v%d' % (ta, ta))
    k('v_xor_b32 v%d, v%d, v%d' % (ta, ta, vl))
    k('v_and_b32 v%d, 3, v%d' % (ta, ta))
    k('v_lshrrev_b32 v%d, 2, v%d' % (tb_, vl))
    k('v_add_u32 v%d, s56, v%d' % (tb_, tb_))
    k('s_mov_b32 s58, %d' % XS)
    k('v_mul_lo_u32 v%d, v%d, s58' % (vxd, tb_))
    k('v_lshl_add_u32 v%d, v%d, 4, v%d' % (vxd, ta, vxd))
    k('v_lshrrev_b32 v%d, 4, v%d' % (ta, vl))
    k('v_lshlrev_b32 v%d, 2, v%d' % (tb_, ta))
    k('v_xor_b32 v%d, v%d, v%d' % (tb_, tb_, vl))
    k('v_and_b32 v%d, 15, v%d' % (tb_, tb_))
    k('v_mul_u32_u24 v%d, %d, v%d' % (vwd, WS, ta))
    k('v_lshl_add_u32 v%d, v%d, 4, v%d' % (vwd, tb_, vwd))
    k('s_lshl_b32 s58, s57, 1')
    k('v_add_u32 v%d, s58, v%d' % (vwd, vwd))
    if TN < 128:
        k('v_mov_b32 v%d, 0x7ffffff0' % ta)
        k('v_cmp_gt_u32 vcc, %d, v%d' % (TN * 2 // 16, tb_))
        k('s_nop 1')
        k('v_cndmask_b32 v%d, v%d, v%d, vcc' % (vwd, ta, vwd))
    k('s_mul_i32 s52, s5, %d' % (PX * 1024))
    k('s_mul_i32 s48, s5, %d' % (PX * 16 * XS))
    k('s_lshl_b32 s53, s5, 11')
    k('s_lshl_b32 s54, s5, 3')
    k('s_add_u32 s53, s53, s54')
    k('s_add_u32 s53, s53, %d' % XB)
    k('s_mul_i32 s49, s5, %d' % (8 * WS))
    k('s_mov_b32 s50, %d' % SB)
    k('s_mov_b32 s51, %d' % SB)

    def dma_ops():
        ops = []
        for j in range(PX):
            g = ['s_add_u32 m0, s50, s52' if j == 0 else 's_add_u32 m0, m0, 1024']
            if j:
                g.append('s_add_u32 s54, s48, %d' % (j * 16 * XS))
                g.append('buffer_load_dwordx4 v%d, s[8:11], s54 offen lds' % vxd)
            else:
                g.append('s_nop 0')
                g.append('buffer_load_dwordx4 v%d, s[8:11], s48 offen lds' % vxd)
            ops.append(g)
        for m in range(nmat):
            for j in range(2):
                g = ['s_add_u32 s54, s50, s53']
                g.append('s_add_u32 m0, s54, %d' % (m * WB + j * 1024))
                if j:
                    g.append('s_add_u32 s54, s49, %d' % (4 * WS))
                    g.append('buffer_load_dwordx4 v%d, s[%d:%d], s54 offen lds' % (vwd, 12 + 4 * m, 15 + 4 * m))
                else:
                    g.append('s_nop 0')
                    g.append('buffer_load_dwordx4 v%d, s[%d:%d], s49 offen lds' % (vwd, 12 + 4 * m, 15 + 4 * m))
                ops.append(g)
        adv = ['s_add_u32 s48, s48, 64', 's_add_u32 s49, s49, %d' % (32 * WS),
               's_add_u32 s50, s50, %d' % STAGE, 's_cmp_eq_u32 s50, %d' % (SB + NB * STAGE),
               's_cselect_b32 s50, %d, s50' % SB]
        ops.append(adv)
        return ops

    for s in range(min(NB, S)):
        emit_list(k, dma_ops())

    vxr = va.get()
    vwr = [va.get() for _ in range(npair)]
    vxa = va.get()
    vwa = [va.get() for _ in range(npair)]
    k('v_and_b32 v%d, 15, v%d' % (ta, vl))
    k('v_lshrrev_b32 v%d, 2, v%d' % (tb_, ta))
    k('v_sub_u32 v%d, 0, v%d' % (tb_, tb_))
    k('v_lshrrev_b32 v%d, 4, v%d' % (vxr, vl))
    k('v_xor_b32 v%d, v%d, v%d' % (tb_, tb_, vxr))
    k('v_and_b32 v%d, 3, v%d' % (tb_, tb_))
    k('s_mul_i32 s58, s6, %d' % (WTM * 64))
    k('v_lshlrev_b32 v%d, 6, v%d' % (vxr, ta))
    k('v_lshl_add_u32 v%d, v%d, 4, v%d' % (vxr, tb_, vxr))
    k('v_add_u32 v%d, s58, v%d' % (vxr, vxr))
    vg = va.get()
    vrr = va.get()
    k('v_lshrrev_b32 v%d, 4, v%d' % (vg, vl))
    k('v_bfe_u32 v%d, v%d, 2, 2' % (vrr, vl))
    for p in range(npair):
        k('s_mul_i32 s58, s7, %d' % (WTN // 32))
        k('s_add_u32 s58, s58, %d' % p)
        k('v_xor_b32 v%d, s58, v%d' % (ta, vrr))
        k('v_lshlrev_b32 v%d, 6, v%d' % (ta, ta))
        k('v_and_b32 v%d, 3, v%d' % (tb_, vl))
        if 2 * p + 1 < nnb:
            k('v_lshl_add_u32 v%d, v%d, 4, v%d' % (ta, tb_, ta))
        else:
            k('v_lshl_add_u32 v%d, v%d, 3, v%d' % (ta, tb_, ta))
        k('v_lshl_add_u32 v%d, v%d, 8, v%d' % (ta, vrr, ta))
        k('v_lshl_add_u32 v%d, v%d, 11, v%d' % (ta, vg, ta))
        k('v_lshl_add_u32 v%d, v%d, 3, v%d' % (ta, vg, ta))
        k('v_add_u32 v%d, %d, v%d' % (vwr[p], XB, ta))

    if ln:
        k('s_waitcnt vmcnt(%d)' % (NB * DPW + naux - 5))
        for i in range(1, 8):
            k('v_add_f32 v%d, v%d, v%d' % (vt, vt, vt + 2 * i))
            k('v_add_f32 v%d, v%d, v%d' % (vt + 1, vt + 1, vt + 2 * i + 1))
        k('v_mul_f32 v%d, %s, v%d' % (vt, fbits(1.0 / D), vt))
        k('v_mul_f32 v%d, %s, v%d' % (vt + 1, fbits(1.0 / D), vt + 1))
        k('v_fma_f32 v%d, -v%d, v%d, v%d' % (vt + 1, vt, vt, vt + 1))
        k('v_max_f32 v%d, 0, v%d' % (vt + 1, vt + 1))
        k('v_add_f32 v%d, %s, v%d' % (vt + 1, fbits(1e-5), vt + 1))
        k('v_rsq_f32 v%d, v%d' % (vt + 1, vt + 1))
        k('v_lshlrev_b32 v%d, 3, v0' % ta)
        L1 = k.newlabel('aux')
        k('v_cmp_gt_u32 vcc, %d, v0' % TM)
        k('s_and_saveexec_b64 s[60:61], vcc')
        k('s_cbranch_execz %s' % L1)
        k('ds_write_b64 v%d, %s offset:%d' % (ta, vr(vt, 2), AUX))
        k.label(L1)
        k('s_mov_b64 exec, s[60:61]')
        L2 = k.newlabel('aux')
        k('v_lshlrev_b32 v%d, 2, v0' % ta)
        k('v_cmp_gt_u32 vcc, %d, v0' % (nmat * TN))
        k('s_and_saveexec_b64 s[60:61], vcc')
        k('s_cbranch_execz %s' % L2)
        k('ds_write_b32 v%d, v%d offset:%d' % (ta, vcs, AUX + TM * 8))
        k.label(L2)
        k('s_mov_b64 exec, s[60:61]')

    xf = [[va.get(4, 4) for _ in range(ntb)] for _ in range(2)]
    wf = [[[va.get(4, 4) for _ in range(nnb)] for _ in range(nmat)] for _ in range(2)]
    nacc = nmat * nnb * ntb * 4
    if acc_agpr:
        accf = lambda m, nb, tb: ar(((m * nnb + nb) * ntb + tb) * 4, 4)
        for i in range(nacc):
            k('v_accvgpr_write_b32 a%d, 0' % i)
    else:
        accb = va.get(nacc, 4)
        accf = lambda m, nb, tb: vr(accb + ((m * nnb + nb) * ntb + tb) * 4, 4)
        for i in range(nacc):
            k('v_mov_b32 v%d, 0' % (accb + i))
        c.accb = accb
    c.__dict__.update(locals())

    def read_ops(st):
        ops = []
        for tb in range(ntb):
            ops.append('ds_read_b128 %s, v%d offset:%d' % (vr(xf[st][tb], 4), vxa, tb * 1024))
        for m in range(nmat):
            for nb in range(nnb):
                p, b = nb // 2, nb % 2
                for i in range(2):
                    ops.append('ds_read_b64_tr_b16 %s, v%d offset:%d' % (
                        vr(wf[st][m][nb] + 2 * i, 2), vwa[p], m * WB + i * 1024 + 8 * b))
        return ops

    def addr_ops():
        ops = ['v_add_u32 v%d, s51, v%d' % (vxa, vxr)]
        for p in range(npair):
            ops.append('v_add_u32 v%d, s51, v%d' % (vwa[p], vwr[p]))
        ops += ['s_add_u32 s51, s51, %d' % STAGE, 's_cmp_eq_u32 s51, %d' % (SB + NB * STAGE),
                's_cselect_b32 s51, %d, s51' % SB]
        return ops

    def mfma_ops(st, swap):
        ops = []
        for m in range(nmat):
            for nb in range(nnb):
                for tb in range(ntb):
                    a, b = vr(wf[st][m][nb], 4), vr(xf[st][tb], 4)
                    if swap:
                        a, b = b, a
                    ops.append('v_mfma_f32_16x16x32_bf16 %s, %s, %s, %s' % (accf(m, nb, tb), a, b, accf(m, nb, tb)))
        return ops

    def body(j_par, swap, do_read, do_dma, vm):
        if do_read:
            k('s_waitcnt vmcnt(%d)' % vm)
            k('s_barrier')
            emit_list(k, addr_ops())
        mem = (read_ops(1 - j_par) if do_read else []) + (dma_ops() if do_dma else [])
        mf = mfma_ops(j_par, swap)
        emit_list(k, mem[:2])
        emit_list(k, interleave(mf, mem[2:]))
        if do_read:
            k('s_waitcnt lgkmcnt(0)')

    def main(swap):
        k('s_waitcnt vmcnt(%d) lgkmcnt(0)' % ((min(NB, S) - 1) * DPW))
        k('s_barrier')
        emit_list(k, addr_ops())
        emit_list(k, read_ops(0))
        k('s_waitcnt lgkmcnt(0)')
        L = max(0, (S - NB) // 2 * 2)
        if L:
            k('s_mov_b32 s55, %d' % (L // 2))
            lab = k.newlabel('loop')
            k.label(lab)
            body(0, swap, True, True, (NB - 2) * DPW)
            body(1, swap, True, True, (NB - 2) * DPW)
            k('s_sub_u32 s55, s55, 1')
            k('s_cmp_lg_u32 s55, 0')
            k('s_cbranch_scc1 %s' % lab)
        for j in range(L, S):
            do_dma = j + NB < S
            issued = min(S, j + NB)
            vm = max(0, issued - (j + 2)) * DPW
            body(j & 1, swap, j + 1 < S, do_dma, vm)
        k('s_nop 7')
        k('s_nop 7')

    c.main = main
    epi(k, c)
    k.label(L_end)
    k('s_endpgm')
    nv = va.n
    na = nacc if acc_agpr else 0
    return k, nv, na, LDS, NWG


def get_acc(k, c, m, nb, tb, tmp):
    idx = ((m * c.nnb + nb) * c.ntb + tb) * 4
    if c.acc_agpr:
        for i in range(4):
            k('v_accvgpr_read_b32 v%d, a%d' % (tmp + i, idx + i))
        return tmp
    return c.accb + idx


def epi_qkv(k, c):
    va = c.va
    vl = c.vl
    L_v = k.newlabel('vpath')
    L_done = k.newlabel('qkvdone')
    mk_srd(k, 24, PTR('ws'), QF_OFF, 12 << 20)
    k('s_cmp_ge_u32 s4, 10')
    k('s_cbranch_scc1 %s' % L_v)
    c.main(False)
    t = va.get(32, 4)
    vg, vst, vcsr, vno, vto, vp = c.vg, t, t + 8, t + 24, t + 28, va.get(8, 4)
    vx = va.get(4)
    k('s_cmp_lt_u32 s4, 5')
    k('s_cselect_b32 s59, %s, 1.0' % fbits(QSCALE))
    k('v_and_b32 v%d, 15, v%d' % (vx, vl))
    k('s_mul_i32 s58, s6, %d' % (c.WTM * 8))
    k('v_lshlrev_b32 v%d, 3, v%d' % (vx + 1, vx))
    k('v_add_u32 v%d, s58, v%d' % (vx + 1, vx + 1))
    for tb in range(c.ntb):
        k('ds_read_b64 %s, v%d offset:%d' % (vr(vst + 2 * tb, 2), vx + 1, c.AUX + tb * 128))
    k('s_mul_i32 s58, s7, %d' % (c.WTN * 4))
    k('v_lshlrev_b32 v%d, 5, v%d' % (vx + 1, vg))
    k('v_add_u32 v%d, s58, v%d' % (vx + 1, vx + 1))
    for p in range(c.npair):
        for hh in range(2):
            k('ds_read_b128 %s, v%d offset:%d' % (vr(vcsr + 8 * p + 4 * hh, 4), vx + 1,
                                                   c.AUX + c.TM * 8 + p * 128 + hh * 16))
    k('s_lshl_b32 s58, s4, 5')
    k('s_lshl_b32 s60, s7, 4')
    k('s_add_u32 s58, s58, s60')
    k('s_cmp_lt_u32 s4, 5')
    k('s_cselect_b32 s61, 0, 160')
    k('s_cselect_b32 s60, 0, 0x400000')
    k('s_sub_u32 s58, s58, s61')
    k('s_mov_b32 s61, 52429')
    for p in range(c.npair):
        for b in range(2):
            o = vno + 2 * p + b
            k('v_lshl_add_u32 v%d, v%d, 1, s58' % (vx + 1, vg))
            k('v_add_u32 v%d, %d, v%d' % (vx + 1, p * 8 + b, vx + 1))
            k('v_mul_lo_u32 v%d, v%d, s61' % (vx + 2, vx + 1))
            k('v_lshrrev_b32 v%d, 18, v%d' % (vx + 2, vx + 2))
            k('v_mul_u32_u24 v%d, 5, v%d' % (vx + 3, vx + 2))
            k('v_sub_u32 v%d, v%d, v%d' % (vx + 3, vx + 1, vx + 3))
            k('v_lshlrev_b32 v%d, 17, v%d' % (o, vx + 2))
            k('v_lshrrev_b32 v%d, 2, v%d' % (vx + 1, vx + 3))
            k('v_lshl_add_u32 v%d, v%d, 10, v%d' % (o, vx + 1, o))
            k('v_bfe_u32 v%d, v%d, 1, 1' % (vx + 1, vx + 3))
            k('v_lshl_add_u32 v%d, v%d, 9, v%d' % (o, vx + 1, o))
            k('v_and_b32 v%d, 1, v%d' % (vx + 1, vx + 3))
            k('v_lshl_add_u32 v%d, v%d, 3, v%d' % (o, vx + 1, o))
            k('v_add_u32 v%d, s60, v%d' % (o, o))
    k('s_mul_i32 s58, s6, %d' % c.WTM)
    k('s_add_u32 s58, s58, s56')
    for tb in range(c.ntb):
        k('v_add_u32 v%d, s58, v%d' % (vx + 1, vx))
        if tb:
            k('v_add_u32 v%d, %d, v%d' % (vx + 1, tb * 16, vx + 1))
        k('v_lshrrev_b32 v%d, 5, v%d' % (vx + 2, vx + 1))
        k('v_and_b32 v%d, 31, v%d' % (vx + 1, vx + 1))
        k('v_lshlrev_b32 v%d, 11, v%d' % (vx + 2, vx + 2))
        k('v_lshl_add_u32 v%d, v%d, 4, v%d' % (vto + tb, vx + 1, vx + 2))
    k('s_waitcnt lgkmcnt(0)')
    for tb in range(c.ntb):
        k('v_mul_f32 v%d, s59, v%d' % (vst + 2 * tb + 1, vst + 2 * tb + 1))
        k('v_mul_f32 v%d, v%d, v%d' % (vst + 2 * tb, vst + 2 * tb, vst + 2 * tb + 1))
        k('v_sub_f32 v%d, 0, v%d' % (vst + 2 * tb, vst + 2 * tb))
    for tb in range(c.ntb):
        for p in range(c.npair):
            for b in range(2):
                a = get_acc(k, c, 0, 2 * p + b, tb, vp)
                q = vp + 4 * b
                for i in range(4):
                    k('v_mul_f32 v%d, v%d, v%d' % (q + i, a + i, vst + 2 * tb + 1))
                    k('v_fmac_f32 v%d, v%d, v%d' % (q + i, vcsr + 8 * p + 4 * b + i, vst + 2 * tb))
                k('v_cvt_pk_bf16_f32 v%d, v%d, v%d' % (q, q, q + 1))
                k('v_cvt_pk_bf16_f32 v%d, v%d, v%d' % (q + 1, q + 2, q + 3))
                k('v_add_u32 v%d, v%d, v%d' % (vx + 1 + b, vno + 2 * p + b, vto + tb))
                k('buffer_store_dwordx2 %s, v%d, s[24:27], 0 offen' % (vr(q, 2), vx + 1 + b))
    k('s_branch %s' % L_done)

    k.label(L_v)
    c.main(True)
    vst2 = t
    vcs2 = vp
    vno2 = va.get(4)
    vy = va.get(8, 4)
    k('s_mul_i32 s58, s6, %d' % (c.WTM * 8))
    k('v_lshlrev_b32 v%d, 5, v%d' % (vx, vg))
    k('v_add_u32 v%d, s58, v%d' % (vx, vx))
    for tb in range(c.ntb):
        for hh in range(2):
            k('ds_read_b128 %s, v%d offset:%d' % (vr(vst2 + 8 * tb + 4 * hh, 4), vx, c.AUX + tb * 128 + hh * 16))
    k('v_bfe_u32 v%d, v%d, 2, 2' % (vx + 1, vl))
    k('v_and_b32 v%d, 3, v%d' % (vx + 2, vl))
    k('v_lshl_add_u32 v%d, v%d, 3, v%d' % (vx + 1, vx + 1, vx + 2))
    k('s_mul_i32 s58, s7, %d' % c.WTN)
    k('v_add_u32 v%d, s58, v%d' % (vx + 1, vx + 1))
    k('v_lshlrev_b32 v%d, 2, v%d' % (vx + 2, vx + 1))
    for p in range(c.npair):
        for b in range(2):
            k('ds_read_b32 v%d, v%d offset:%d' % (vcs2 + 2 * p + b, vx + 2,
                                                  c.AUX + c.TM * 8 + (p * 32 + 4 * b) * 4))
    k('s_sub_u32 s58, s57, 1280')
    k('s_movk_i32 s61, 3277')
    for p in range(c.npair):
        for b in range(2):
            o = vno2 + 2 * p + b
            k('v_add_u32 v%d, s58, v%d' % (vx + 2, vx + 1))
            k('v_add_u32 v%d, %d, v%d' % (vx + 2, p * 32 + 4 * b, vx + 2))
            k('v_mul_lo_u32 v%d, v%d, s61' % (vx + 3, vx + 2))
            k('v_lshrrev_b32 v%d, 16, v%d' % (vx + 3, vx + 3))
            k('v_mul_u32_u24 v%d, 20, v%d' % (o, vx + 3))
            k('v_sub_u32 v%d, v%d, v%d' % (o, vx + 2, o))
            k('v_lshlrev_b32 v%d, 4, v%d' % (o, o))
            k('v_lshl_add_u32 v%d, v%d, 17, v%d' % (o, vx + 3, o))
    k('v_and_b32 v%d, 1, v%d' % (vx + 2, vg))
    k('v_lshlrev_b32 v%d, 9, v%d' % (vx + 2, vx + 2))
    k('v_lshrrev_b32 v%d, 1, v%d' % (vx + 3, vg))
    k('v_lshl_add_u32 v%d, v%d, 3, v%d' % (vx + 2, vx + 3, vx + 2))
    k('s_lshl_b32 s58, s3, 2')
    k('s_lshl_b32 s60, s6, 1')
    k('s_add_u32 s58, s58, s60')
    k('s_lshl_b32 s58, s58, 11')
    k('s_add_u32 s58, s58, 0x%x' % (VF_OFF - QF_OFF))
    k('v_add_u32 v%d, s58, v%d' % (vx + 2, vx + 2))
    for p in range(c.npair):
        for b in range(2):
            k('v_add_u32 v%d, v%d, v%d' % (vno2 + 2 * p + b, vno2 + 2 * p + b, vx + 2))
    k('s_waitcnt lgkmcnt(0)')
    for tb in range(c.ntb):
        for r in range(4):
            m_, s_ = vst2 + 8 * tb + 2 * r, vst2 + 8 * tb + 2 * r + 1
            k('v_mul_f32 v%d, v%d, v%d' % (m_, m_, s_))
            k('v_sub_f32 v%d, 0, v%d' % (m_, m_))
    for tb in range(c.ntb):
        for p in range(c.npair):
            for b in range(2):
                q = vy + 4 * b
                a = get_acc(k, c, 0, 2 * p + b, tb, q)
                for r in range(4):
                    k('v_mul_f32 v%d, v%d, v%d' % (q + r, a + r, vst2 + 8 * tb + 2 * r + 1))
                    k('v_fmac_f32 v%d, v%d, v%d' % (q + r, vcs2 + 2 * p + b, vst2 + 8 * tb + 2 * r))
                k('v_cvt_pk_bf16_f32 v%d, v%d, v%d' % (q, q, q + 1))
                k('v_cvt_pk_bf16_f32 v%d, v%d, v%d' % (q + 1, q + 2, q + 3))
                off = (tb >> 1) * 2048 + (tb & 1) * 1024
                k('buffer_store_dwordx2 %s, v%d, s[24:27], 0 offen offset:%d' % (vr(q, 2), vno2 + 2 * p + b, off))
    k.label(L_done)


def epi_resid(k, c):
    va = c.va
    vl = c.vl
    c.main(False)
    t = va.get(8, 4)
    vs = va.get(2)
    vx = va.get(4)
    assert c.ntb == 1
    k('v_mov_b32 v%d, 0' % vs)
    k('v_mov_b32 v%d, 0' % (vs + 1))
    for p in range(c.npair):
        full = 2 * p + 1 < c.nnb
        res = c.vres + p * 4
        nbk = 2 if full else 1
        for b in range(nbk):
            a = get_acc(k, c, 0, 2 * p + b, 0, t + 4 * b)
            for i in range(4):
                src = res + 2 * b + i // 2
                if i % 2 == 0:
                    k('v_lshlrev_b32 v%d, 16, v%d' % (vx, src))
                else:
                    k('v_and_b32 v%d, 0xffff0000, v%d' % (vx, src))
                k('v_add_f32 v%d, v%d, v%d' % (t + 4 * b + i, a + i, vx))
        for b in range(nbk):
            k('v_cvt_pk_bf16_f32 v%d, v%d, v%d' % (res + 2 * b, t + 4 * b, t + 4 * b + 1))
            k('v_cvt_pk_bf16_f32 v%d, v%d, v%d' % (res + 2 * b + 1, t + 4 * b + 2, t + 4 * b + 3))
        if full:
            k('buffer_store_dwordx4 %s, v%d, s[24:27], 0 offen offset:%d' % (vr(res, 4), c.vra, p * 64))
        else:
            k('v_lshlrev_b32 v%d, 3, v%d' % (vx + 1, c.vg))
            k('v_sub_u32 v%d, v%d, v%d' % (vx + 1, c.vra, vx + 1))
            k('buffer_store_dwordx2 %s, v%d, s[24:27], 0 offen offset:%d' % (vr(res, 2), vx + 1, p * 64))
        for i in range(2 * nbk):
            k('v_lshlrev_b32 v%d, 16, v%d' % (vx, res + i))
            k('v_and_b32 v%d, 0xffff0000, v%d' % (vx + 2, res + i))
            k('v_add_f32 v%d, v%d, v%d' % (vs, vs, vx))
            k('v_fmac_f32 v%d, v%d, v%d' % (vs + 1, vx, vx))
            k('v_add_f32 v%d, v%d, v%d' % (vs, vs, vx + 2))
            k('v_fmac_f32 v%d, v%d, v%d' % (vs + 1, vx + 2, vx + 2))
    if c.want_stats:
        for sh in (16, 32):
            k('v_xor_b32 v%d, %d, v%d' % (vx, sh, vl))
            k('v_lshlrev_b32 v%d, 2, v%d' % (vx, vx))
            k('ds_bpermute_b32 v%d, v%d, v%d' % (vx + 1, vx, vs))
            k('ds_bpermute_b32 v%d, v%d, v%d' % (vx + 2, vx, vs + 1))
            k('s_waitcnt lgkmcnt(0)')
            k('v_add_f32 v%d, v%d, v%d' % (vs, vs, vx + 1))
            k('v_add_f32 v%d, v%d, v%d' % (vs + 1, vs + 1, vx + 2))
        k('s_lshl_b32 s58, s6, 4')
        k('s_add_u32 s58, s58, s56')
        k('v_add_u32 v%d, s58, v%d' % (vx, vl))
        k('v_lshlrev_b32 v%d, 6, v%d' % (vx, vx))
        k('s_lshl_b32 s58, s4, 3')
        k('s_add_u32 s58, s58, 0x%x' % ST_OFF)
        k('v_add_u32 v%d, s58, v%d' % (vx, vx))
        L1 = k.newlabel('st')
        k('v_cmp_gt_u32 vcc, 16, v%d' % vl)
        k('s_and_saveexec_b64 s[60:61], vcc')
        k('s_cbranch_execz %s' % L1)
        k('buffer_store_dwordx2 %s, v%d, s[20:23], 0 offen' % (vr(vs, 2), vx))
        k.label(L1)
        k('s_mov_b64 exec, s[60:61]')


def epi_geglu(k, c):
    va = c.va
    vl = c.vl
    c.main(False)
    vst = va.get(2 * c.ntb, 2)
    vcg = va.get(8, 4)
    vcu = va.get(8, 4)
    tg = va.get(8, 4)
    tu = va.get(8, 4)
    vx = va.get(4)
    vo = va.get()
    vg = c.vg
    k('v_and_b32 v%d, 15, v%d' % (vx, vl))
    k('s_mul_i32 s58, s6, %d' % (c.WTM * 8))
    k('v_lshlrev_b32 v%d, 3, v%d' % (vx + 1, vx))
    k('v_add_u32 v%d, s58, v%d' % (vx + 1, vx + 1))
    for tb in range(c.ntb):
        k('ds_read_b64 %s, v%d offset:%d' % (vr(vst + 2 * tb, 2), vx + 1, c.AUX + tb * 128))
    k('s_mul_i32 s58, s6, %d' % c.WTM)
    k('s_add_u32 s58, s58, s56')
    k('v_add_u32 v%d, s58, v%d' % (vo, vx))
    k('v_mul_u32_u24 v%d, %d, v%d' % (vo, c.N * 2, vo))
    k('s_lshl_b32 s58, s57, 1')
    k('v_add_u32 v%d, s58, v%d' % (vo, vo))
    k('s_waitcnt lgkmcnt(0)')
    for tb in range(c.ntb):
        k('v_mul_f32 v%d, v%d, v%d' % (vst + 2 * tb, vst + 2 * tb, vst + 2 * tb + 1))
        k('v_sub_f32 v%d, 0, v%d' % (vst + 2 * tb, vst + 2 * tb))
    C1 = -2.0 * 1.4426950408889634 * 0.7978845608028654
    C2 = C1 * 0.044715
    k('s_mov_b32 s59, %s' % fbits(C1))
    k('s_mov_b32 s60, %s' % fbits(C2))
    for p in range(c.npair):
        full = 2 * p + 1 < c.nnb
        nbk = 2 if full else 1
        if full:
            k('v_lshlrev_b32 v%d, 5, v%d' % (vx + 1, vg))
        else:
            k('v_lshlrev_b32 v%d, 4, v%d' % (vx + 1, vg))
        for b in range(nbk):
            k('ds_read_b128 %s, v%d offset:%d' % (vr(vcg + 4 * b, 4), vx + 1, c.AUX + c.TM * 8 + p * 128 + b * 16))
            k('ds_read_b128 %s, v%d offset:%d' % (vr(vcu + 4 * b, 4), vx + 1,
                                                   c.AUX + c.TM * 8 + c.TN * 4 + p * 128 + b * 16))
        if full:
            k('v_lshlrev_b32 v%d, 3, v%d' % (vx + 2, vg))
        else:
            k('v_lshlrev_b32 v%d, 2, v%d' % (vx + 2, vg))
        k('v_add_u32 v%d, %d, v%d' % (vx + 2, p * 32, vx + 2))
        k('v_lshl_add_u32 v%d, v%d, 1, v%d' % (vx + 3, vx + 2, vo))
        k('v_add_u32 v%d, s57, v%d' % (vx + 2, vx + 2))
        k('v_mov_b32 v%d, 0x7ffffff0' % (vx + 1))
        k('v_cmp_gt_u32 vcc, %d, v%d' % (c.N, vx + 2))
        k('s_nop 1')
        k('v_cndmask_b32 v%d, v%d, v%d, vcc' % (vx + 3, vx + 1, vx + 3))
        k('s_waitcnt lgkmcnt(0)')
        for tb in range(c.ntb):
            for b in range(nbk):
                ag = get_acc(k, c, 0, 2 * p + b, tb, tg + 4 * b)
                au = get_acc(k, c, 1, 2 * p + b, tb, tu + 4 * b)
                for i in range(4):
                    g_, u_ = tg + 4 * b + i, tu + 4 * b + i
                    k('v_mul_f32 v%d, v%d, v%d' % (g_, ag + i, vst + 2 * tb + 1))
                    k('v_fmac_f32 v%d, v%d, v%d' % (g_, vcg + 4 * b + i, vst + 2 * tb))
                    k('v_mul_f32 v%d, v%d, v%d' % (u_, au + i, vst + 2 * tb + 1))
                    k('v_fmac_f32 v%d, v%d, v%d' % (u_, vcu + 4 * b + i, vst + 2 * tb))
                    k('v_mul_f32 v%d, v%d, v%d' % (vx, g_, g_))
                    k('v_mov_b32 v%d, s59' % (vx + 1))
                    k('v_fmac_f32 v%d, s60, v%d' % (vx + 1, vx))
                    k('v_mul_f32 v%d, v%d, v%d' % (vx, vx + 1, g_))
                    k('v_exp_f32 v%d, v%d' % (vx, vx))
                    k('v_mul_f32 v%d, v%d, v%d' % (u_, u_, g_))
                    k('v_add_f32 v%d, 1.0, v%d' % (vx, vx))
                    k('v_rcp_f32 v%d, v%d' % (vx, vx))
                    k('s_nop 0')
                    k('v_mul_f32 v%d, v%d, v%d' % (g_, u_, vx))
            for b in range(nbk):
                k('v_cvt_pk_bf16_f32 v%d, v%d, v%d' % (tu + 2 * b, tg + 4 * b, tg + 4 * b + 1))
                k('v_cvt_pk_bf16_f32 v%d, v%d, v%d' % (tu + 2 * b + 1, tg + 4 * b + 2, tg + 4 * b + 3))
            off = tb * 16 * c.N * 2
            if off >= 4096:
                k('v_add_u32 v%d, %d, v%d' % (vx + 2, off, vx + 3))
                adr, off = vx + 2, 0
            else:
                adr = vx + 3
            if full:
                k('buffer_store_dwordx4 %s, v%d, s[24:27], 0 offen offset:%d' % (vr(tu, 4), adr, off))
                k('s_nop 1')
            else:
                k('buffer_store_dwordx2 %s, v%d, s[24:27], 0 offen offset:%d' % (vr(tu, 2), adr, off))
```

```python
from common import *

NWG_PREP = 168 + 512 + 256 + 128


def prep_kernel():
    k = Kern('prep_kernel')
    L_end = k.newlabel('end')
    L_b = k.newlabel('roleb')
    L_c = k.newlabel('rolec')
    L_d = k.newlabel('roled')
    k('s_cmp_ge_u32 s2, %d' % NWG_PREP)
    k('s_cbranch_scc1 %s' % L_end)
    load_ptr(k, 20, 'ws')
    k('s_cmp_ge_u32 s2, 168')
    k('s_cbranch_scc1 %s' % L_b)
    L_g = k.newlabel('ag')
    L_u = k.newlabel('au')
    L_go = k.newlabel('ago')
    k('s_cmp_ge_u32 s2, 60')
    k('s_cbranch_scc1 %s' % L_g)
    load_ptr(k, 4, 'A_wqkv')
    k('s_mov_b32 s24, 3840')
    k('s_mov_b32 s25, %d' % KSIZE['A_wqkv'])
    k('s_mov_b32 s26, s2')
    k('s_mov_b32 s27, 0')
    k('s_branch %s' % L_go)
    k.label(L_g)
    k('s_cmp_ge_u32 s2, 114')
    k('s_cbranch_scc1 %s' % L_u)
    load_ptr(k, 4, 'w_gate')
    k('s_mov_b32 s24, 3456')
    k('s_mov_b32 s25, %d' % KSIZE['w_gate'])
    k('s_sub_u32 s26, s2, 60')
    k('s_mov_b32 s27, 1920')
    k('s_branch %s' % L_go)
    k.label(L_u)
    load_ptr(k, 4, 'w_up')
    k('s_mov_b32 s24, 3456')
    k('s_mov_b32 s25, %d' % KSIZE['w_up'])
    k('s_sub_u32 s26, s2, 114')
    k('s_mov_b32 s27, %d' % (1920 + 1728))
    k.label(L_go)
    k('s_waitcnt lgkmcnt(0)')
    k('s_mov_b32 s8, s4')
    k('s_and_b32 s9, s5, 0xffff')
    k('s_mov_b32 s10, s25')
    k('s_mov_b32 s11, 0x20000')
    mk_srd(k, 12, 20, CS_OFF, 5376 * 4)
    k('v_and_b32 v1, 15, v0')
    k('v_lshrrev_b32 v2, 4, v0')
    k('s_mul_i32 s28, s24, 40')
    k('v_mul_lo_u32 v3, v2, s28')
    k('s_lshl_b32 s29, s26, 6')
    k('v_lshl_add_u32 v3, v1, 2, v3')
    k('v_add_u32 v3, s29, v3')
    k('s_mov_b32 s30, 0')
    for i in range(40):
        k('buffer_load_dword v%d, v3, s[8:11], s30 offen' % (8 + i))
        k('s_add_u32 s30, s30, s24')
    k('v_mov_b32 v4, 0')
    k('v_mov_b32 v5, 0')
    for i in range(40):
        k('s_waitcnt vmcnt(%d)' % (39 - i))
        k('v_lshlrev_b32 v6, 16, v%d' % (8 + i))
        k('v_and_b32 v7, 0xffff0000, v%d' % (8 + i))
        k('v_add_f32 v4, v4, v6')
        k('v_add_f32 v5, v5, v7')
    k('v_lshlrev_b32 v6, 3, v0')
    k('ds_write_b64 v6, v[4:5]')
    k('s_waitcnt lgkmcnt(0)')
    k('s_barrier')
    L_a_done = k.newlabel('adone')
    k('v_cmp_gt_u32 vcc, 32, v0')
    k('s_and_saveexec_b64 s[32:33], vcc')
    k('s_cbranch_execz %s' % L_a_done)
    k('v_lshlrev_b32 v6, 2, v0')
    for ty in range(16):
        k('ds_read_b32 v%d, v6 offset:%d' % (8 + ty, ty * 128))
    k('s_waitcnt lgkmcnt(0)')
    for ty in range(1, 16):
        k('v_add_f32 v8, v8, v%d' % (8 + ty))
    k('s_lshl_b32 s29, s26, 5')
    k('s_add_u32 s29, s29, s27')
    k('s_lshl_b32 s29, s29, 2')
    k('v_add_u32 v6, s29, v6')
    k('buffer_store_dword v8, v6, s[12:15], 0 offen')
    k.label(L_a_done)
    k('s_mov_b64 exec, s[32:33]')
    k('s_branch %s' % L_end)

    k.label(L_b)
    k('s_cmp_ge_u32 s2, %d' % (168 + 512))
    k('s_cbranch_scc1 %s' % L_c)
    load_ptr(k, 4, 'A_x')
    k('s_waitcnt lgkmcnt(0)')
    mk_srd(k, 8, 4, 0, KSIZE['A_x'])
    mk_srd(k, 12, 20, ST_OFF, 2048 * 64)
    k('s_sub_u32 s24, s2, 168')
    k('s_lshl_b32 s24, s24, 2')
    k('v_lshrrev_b32 v1, 6, v0')
    k('v_and_b32 v2, 63, v0')
    k('v_add_u32 v1, s24, v1')
    k('v_mul_u32_u24 v3, 1280, v1')
    k('v_lshl_add_u32 v4, v2, 3, v3')
    k('v_lshl_add_u32 v5, v2, 2, v3')
    k('buffer_load_dwordx2 v[8:9], v4, s[8:11], 0 offen')
    k('buffer_load_dwordx2 v[10:11], v4, s[8:11], 0 offen offset:512')
    k('buffer_load_dword v12, v5, s[8:11], 0 offen offset:1024')
    k('v_mov_b32 v14, 0')
    k('v_mov_b32 v15, 0')
    k('s_waitcnt vmcnt(0)')
    for i in range(5):
        k('v_lshlrev_b32 v6, 16, v%d' % (8 + i))
        k('v_and_b32 v7, 0xffff0000, v%d' % (8 + i))
        k('v_add_f32 v14, v14, v6')
        k('v_fmac_f32 v15, v6, v6')
        k('v_add_f32 v14, v14, v7')
        k('v_fmac_f32 v15, v7, v7')
    for sh in (1, 2, 4, 8, 16, 32):
        k('v_xor_b32 v6, %d, v2' % sh)
        k('v_lshlrev_b32 v6, 2, v6')
        k('ds_bpermute_b32 v16, v6, v14')
        k('ds_bpermute_b32 v17, v6, v15')
        k('s_waitcnt lgkmcnt(0)')
        k('v_add_f32 v14, v14, v16')
        k('v_add_f32 v15, v15, v17')
    k('v_mov_b32 v16, 0')
    k('v_cmp_eq_u32 vcc, 0, v2')
    k('s_nop 1')
    k('v_cndmask_b32 v16, v16, v14, vcc')
    k('v_cmp_eq_u32 vcc, 1, v2')
    k('s_nop 1')
    k('v_cndmask_b32 v16, v16, v15, vcc')
    k('v_lshlrev_b32 v6, 6, v1')
    k('v_lshl_add_u32 v6, v2, 2, v6')
    L_b_done = k.newlabel('bdone')
    k('v_cmp_gt_u32 vcc, 16, v2')
    k('s_and_saveexec_b64 s[32:33], vcc')
    k('s_cbranch_execz %s' % L_b_done)
    k('buffer_store_dword v16, v6, s[12:15], 0 offen')
    k.label(L_b_done)
    k('s_mov_b64 exec, s[32:33]')
    k('s_branch %s' % L_end)

    k.label(L_c)
    k('s_cmp_ge_u32 s2, %d' % (168 + 512 + 256))
    k('s_cbranch_scc1 %s' % L_d)
    k('s_waitcnt lgkmcnt(0)')
    mk_srd(k, 12, 20, QF_OFF, 8 << 20)
    k('s_sub_u32 s24, s2, %d' % (168 + 512))
    k('s_lshl_b32 s24, s24, 4')
    k('v_lshrrev_b32 v1, 4, v0')
    k('v_add_u32 v1, s24, v1')
    k('v_lshlrev_b32 v1, 11, v1')
    k('v_and_b32 v2, 15, v0')
    k('v_lshl_add_u32 v1, v2, 6, v1')
    for i in range(4):
        k('v_mov_b32 v%d, 0' % (4 + i))
    for i in range(4):
        k('buffer_store_dwordx4 v[4:7], v1, s[12:15], 0 offen offset:%d' % (1024 + i * 16))
    k('s_branch %s' % L_end)

    k.label(L_d)
    k('s_waitcnt lgkmcnt(0)')
    mk_srd(k, 12, 20, VF_OFF, 4 << 20)
    k('s_sub_u32 s24, s2, %d' % (168 + 512 + 256))
    k('s_lshl_b32 s24, s24, 5')
    k('v_lshrrev_b32 v1, 3, v0')
    k('v_add_u32 v1, s24, v1')
    k('v_lshlrev_b32 v1, 10, v1')
    k('v_and_b32 v2, 3, v0')
    k('v_mul_u32_u24 v3, 48, v2')
    k('v_add_u32 v1, v1, v3')
    k('v_and_b32 v3, 4, v0')
    k('v_lshl_add_u32 v1, v3, 7, v1')
    k('v_mov_b32 v8, 0x3f803f80')
    k('v_cmp_eq_u32 vcc, 0, v2')
    k('v_mov_b32 v4, 0')
    k('s_nop 1')
    k('v_cndmask_b32 v8, v4, v8, vcc')
    k('v_mov_b32 v9, v8')
    k('v_mov_b32 v10, v8')
    k('v_mov_b32 v11, v8')
    k('v_mov_b32 v5, 0')
    k('v_mov_b32 v6, 0')
    k('v_mov_b32 v7, 0')
    k('buffer_store_dwordx4 v[8:11], v1, s[12:15], 0 offen offset:320')
    k('buffer_store_dwordx4 v[4:7], v1, s[12:15], 0 offen offset:336')
    k('buffer_store_dwordx4 v[4:7], v1, s[12:15], 0 offen offset:352')
    k.label(L_end)
    k('s_endpgm')
    return k, 48, 0
```

```python
import sys
import os
sys.path.insert(0, os.path.dirname(os.path.abspath(__file__)))
from common import *
from prep import prep_kernel, NWG_PREP
from gemm import *
from attn import attn_kernel

XSZ = S_TOK * D * 2


def build():
    kerns = []
    launches = []

    k, nv, na = prep_kernel()
    kerns.append((k, nv, na))
    L_prep = (k.name, NWG_PREP, 256, 2048)

    def qkv(name, xsrc):
        k, nv, na, lds, nwg = gemm_kernel(
            name, TM=128, TN=128, WM=2, WN=2, K=640, NB=4, mtiles=16, ntiles=15, xsrc=xsrc, XS=1280,
            wsrcs=['A_wqkv'], WS=3840, N=1920, epi=epi_qkv, ln=True, cs_base=(0,))
        kerns.append((k, nv, na))
        return (k.name, nwg, 256, lds)

    def oproj(name, resid, dst):
        k, nv, na, lds, nwg = gemm_kernel(
            name, TM=64, TN=80, WM=4, WN=1, K=640, NB=4, mtiles=32, ntiles=8, xsrc=('ws', O_OFF, XSZ), XS=1280,
            wsrcs=['A_wo'], WS=1280, N=640, epi=epi_resid, ln=False, resid=resid, dst=dst)
        kerns.append((k, nv, na))
        return (k.name, nwg, 256, lds)

    def geglu(name, xsrc):
        k, nv, na, lds, nwg = gemm_kernel(
            name, TM=128, TN=112, WM=4, WN=1, K=640, NB=4, mtiles=16, ntiles=16, xsrc=xsrc, XS=1280,
            wsrcs=['w_gate', 'w_up'], WS=3456, N=1728, epi=epi_geglu, ln=True, cs_base=(1920, 1920 + 1728),
            dst=('ws', H_OFF, S_TOK * DF * 2), acc_agpr=True)
        kerns.append((k, nv, na))
        return (k.name, nwg, 256, lds)

    def down(name, resid, dst, want_stats=True):
        k, nv, na, lds, nwg = gemm_kernel(
            name, TM=64, TN=80, WM=4, WN=1, K=1728, NB=4, mtiles=32, ntiles=8, xsrc=('ws', H_OFF, S_TOK * DF * 2),
            XS=3456, wsrcs=['w_down'], WS=1280, N=640, epi=epi_resid, ln=False, resid=resid, dst=dst,
            want_stats=want_stats)
        kerns.append((k, nv, na))
        return (k.name, nwg, 256, lds)

    k, nv, na, lds, nwg = attn_kernel()
    kerns.append((k, nv, na))
    L_attn = (k.name, nwg, 512, lds)

    X0 = ('ptr', 'A_x')
    X1 = ('ws', X1_OFF, XSZ)
    X2 = ('ws', X2_OFF, XSZ)
    OUT = ('ptr', 'out')
    L_g = geglu('geglu_kernel', X1)
    launches = [
        L_prep,
        qkv('qkv0_kernel', X0), L_attn, oproj('oproj0_kernel', X0, X1), L_g, down('down0_kernel', X1, X2),
        qkv('qkv1_kernel', X2), L_attn, oproj('oproj1_kernel', X2, X1), L_g,
        down('down1_kernel', X1, OUT, want_stats=False),
    ]
    ref = open(os.path.join(os.path.dirname(os.path.abspath(__file__)), '..', 'cdna_kernels',
                            'interleave_layers__mha_block__glu_gated_geglu__prompt.s.ref')).read()
    head = []
    for ln in ref.split('\n'):
        if ln.startswith('; @launch'):
            break
        head.append(ln)
    out = head[:]
    for (n, g, b, lds) in launches:
        out.append('; @launch kernel=%s grid=(%d,1,1) block=(%d,1,1) lds=%d' % (n, g, b, lds))
    out.append('.amdgcn_target "amdgcn-amd-amdhsa--gfx950"')
    out.append('.text')
    descs = []
    for (k, nv, na) in kerns:
        body, desc = finish(k, nv, na)
        out.append(body)
        descs.append(desc)
        print('%-16s vgpr %3d agpr %3d lines %d' % (k.name, nv, na, len(k.lines)), file=sys.stderr)
    out.append('.section .rodata,"a"')
    for d in descs:
        out.append('.p2align 6')
        out.append(d)
    return '\n'.join(out) + '\n'


if __name__ == '__main__':
    dst = sys.argv[1] if len(sys.argv) > 1 else os.path.join(
        os.path.dirname(os.path.abspath(__file__)), '..', 'cdna_kernels',
        'interleave_layers__mha_block__glu_gated_geglu__prompt.s')
    open(dst, 'w').write(build())
```

```python
from common import *
from gemm import PTR
import os
STAMP = os.environ.get('STAMP')

NWG_ATTN = 256
CH = 8
NCH = 64 // CH
CHB = CH * 4096
NBUF = 3
THR = '0x41000000'


def attn_kernel():
    k = Kern('attn_kernel')
    L_end = k.newlabel('end')
    k('s_cmp_ge_u32 s2, %d' % NWG_ATTN)
    k('s_cbranch_scc1 %s' % L_end)
    if STAMP:
        k('s_memtime s[84:85]')
        k('s_memrealtime s[94:95]')
    k('s_load_dwordx4 s[80:83], s[0:1], 64')
    k('s_and_b32 s3, s2, 31')
    k('s_lshr_b32 s4, s2, 5')
    va = VAlloc(1)
    vl = va.get()
    k('v_and_b32 v%d, 63, v0' % vl)
    k('v_lshrrev_b32 v2, 6, v0')
    va.get()
    k('s_nop 0')
    k('v_readfirstlane_b32 s5, v2')
    k('s_waitcnt lgkmcnt(0)')
    mk_srd(k, 8, PTR('ws'), QF_OFF, 12 << 20)
    mk_srd(k, 12, PTR('ws'), O_OFF, S_TOK * D * 2)
    vo16 = va.get()
    k('v_lshlrev_b32 v%d, 4, v%d' % (vo16, vl))
    k('s_lshl_b32 s20, s3, 17')
    q = va.get(8, 4)
    k('s_lshl_b32 s21, s4, 3')
    k('s_add_u32 s21, s21, s5')
    k('s_lshl_b32 s22, s21, 11')
    k('s_add_u32 s22, s22, s20')
    k('buffer_load_dwordx4 %s, v%d, s[8:11], s22 offen' % (vr(q, 4), vo16))
    k('buffer_load_dwordx4 %s, v%d, s[8:11], s22 offen offset:1024' % (vr(q + 4, 4), vo16))
    k('s_lshl_b32 s23, s5, 11')
    k('s_add_u32 s24, s20, s23')
    k('s_add_u32 s25, s24, 0x800000')
    k('s_add_u32 s24, s24, 0x400000')
    k('s_mov_b32 s26, 0')

    def dma():
        k('s_add_u32 m0, s26, s23')
        k('s_nop 0')
        k('buffer_load_dwordx4 v%d, s[8:11], s24 offen lds' % vo16)
        k('buffer_load_dwordx4 v%d, s[8:11], s24 offen offset:1024 lds' % vo16)
        k('s_add_u32 m0, m0, %d' % (CH * 2048))
        k('s_nop 0')
        k('buffer_load_dwordx4 v%d, s[8:11], s25 offen lds' % vo16)
        k('buffer_load_dwordx4 v%d, s[8:11], s25 offen offset:1024 lds' % vo16)
        k('s_add_u32 s24, s24, %d' % (CH * 2048))
        k('s_add_u32 s25, s25, %d' % (CH * 2048))
        k('s_add_u32 s26, s26, %d' % CHB)
        k('s_cmp_eq_u32 s26, %d' % (NBUF * CHB))
        k('s_cselect_b32 s26, 0, s26')

    mk_srd(k, 16, PTR('ws'), KM_OFF, 320 * 4)
    km = va.get(6)
    k('v_lshlrev_b32 v%d, 2, v%d' % (km + 5, vl))
    for i in range(5):
        k('buffer_load_dword v%d, v%d, s[16:19], 0 offen offset:%d' % (km + i, km + 5, 256 * i))
    dma()
    dma()
    kfs = [va.get(8, 4), va.get(8, 4)]
    vfs = [va.get(8, 4), va.get(8, 4)]
    s_ = [va.get(16, 4), va.get(16, 4)]
    p_ = va.get(8, 4)
    o_ = va.get(16, 4)
    nm = va.get(16, 4)
    tm = va.get(6)
    vcur = va.get()
    vnxt = va.get()
    c100 = va.get()
    k('v_mov_b32 v%d, 0x42c80000' % c100)
    for i in range(16):
        k('v_mov_b32 v%d, 0' % (o_ + i))
    k('s_mov_b32 s27, 0')
    k('s_mov_b32 s28, %d' % CHB)
    k('v_mov_b32 v%d, v%d' % (vcur, vo16))
    k('v_add_u32 v%d, s28, v%d' % (vnxt, vo16))

    def rd_k(tile_in_chunk):
        kf = kfs[tile_in_chunk & 1]
        if tile_in_chunk < CH:
            a, off = vcur, tile_in_chunk * 2048
        else:
            a, off = vnxt, (tile_in_chunk - CH) * 2048
        return ['ds_read_b128 %s, v%d offset:%d' % (vr(kf, 4), a, off),
                'ds_read_b128 %s, v%d offset:%d' % (vr(kf + 4, 4), a, off + 1024)]

    def rd_v(tile_in_chunk):
        off = CH * 2048 + tile_in_chunk * 2048
        vf = vfs[tile_in_chunk & 1]
        return ['ds_read_b128 %s, v%d offset:%d' % (vr(vf, 4), vcur, off),
                'ds_read_b128 %s, v%d offset:%d' % (vr(vf + 4, 4), vcur, off + 1024)]

    def mf_s(dst, cinit, par):
        kf = kfs[par]
        return ['v_mfma_f32_32x32x16_bf16 %s, %s, %s, %s' % (vr(dst, 16), vr(kf, 4), vr(q, 4), cinit),
                'v_mfma_f32_32x32x16_bf16 %s, %s, %s, %s' % (vr(dst, 16), vr(kf + 4, 4), vr(q + 4, 4), vr(dst, 16))]

    def mf_pv(par):
        vf = vfs[par]
        return ['v_mfma_f32_32x32x16_bf16 %s, %s, %s, %s' % (vr(o_, 16), vr(vf, 4), vr(p_, 4), vr(o_, 16)),
                'v_mfma_f32_32x32x16_bf16 %s, %s, %s, %s' % (vr(o_, 16), vr(vf + 4, 4), vr(p_ + 4, 4), vr(o_, 16))]

    def max_ops(s):
        ops = []
        for i in range(5):
            ops.append('v_max3_f32 v%d, v%d, v%d, v%d' % (tm + i, s + 3 * i, s + 3 * i + 1, s + 3 * i + 2))
        ops.append('v_max3_f32 v%d, v%d, v%d, v%d' % (tm, tm, tm + 1, tm + 2))
        ops.append('v_max3_f32 v%d, v%d, v%d, v%d' % (tm + 3, tm + 3, tm + 4, s + 15))
        ops.append('v_max_f32 v%d, v%d, v%d' % (tm, tm, tm + 3))
        return ops

    def rowmax():
        k('v_mov_b32 v%d, v%d' % (tm + 1, tm))
        k('s_nop 1')
        k('v_permlane32_swap_b32 v%d, v%d' % (tm, tm + 1))
        k('v_max_f32 v%d, v%d, v%d' % (tm, tm, tm + 1))

    def exp_ops(s):
        ops = ['v_exp_f32 v%d, v%d' % (s + i, s + i) for i in range(16)]
        return ops

    def cvt_ops(s):
        return ['v_cvt_pk_bf16_f32 v%d, v%d, v%d' % (p_ + i, s + 2 * i, s + 2 * i + 1) for i in range(8)]

    k('s_waitcnt vmcnt(4)')
    k('s_barrier')
    emit_list(k, rd_k(0))
    k('s_waitcnt lgkmcnt(0)')
    emit_list(k, mf_s(s_[0], '0', 0))
    emit_list(k, rd_k(1))
    k('s_nop 7')
    k('s_nop 7')
    emit_list(k, max_ops(s_[0]))
    rowmax()
    for i in range(16):
        k('v_sub_f32 v%d, 0, v%d' % (nm + i, tm))
    for i in range(16):
        k('v_sub_f32 v%d, v%d, v%d' % (s_[0] + i, s_[0] + i, tm))
    k('v_max3_f32 v%d, v%d, v%d, v%d' % (km, km, km + 1, km + 2))
    k('v_max3_f32 v%d, v%d, v%d, v%d' % (km, km, km + 3, km + 4))
    for sh in (1, 2, 4, 8, 16, 32):
        k('v_xor_b32 v%d, %d, v%d' % (km + 1, sh, vl))
        k('v_lshlrev_b32 v%d, 2, v%d' % (km + 1, km + 1))
        k('ds_bpermute_b32 v%d, v%d, v%d' % (km + 2, km + 1, km))
        k('s_waitcnt lgkmcnt(0)')
        k('v_max_f32 v%d, v%d, v%d' % (km, km, km + 2))
    k('v_mov_b32 v%d, 0' % (km + 1))
    for i in range(8):
        k('v_lshlrev_b32 v%d, 16, v%d' % (km + 2, q + i))
        k('v_and_b32 v%d, 0xffff0000, v%d' % (km + 3, q + i))
        k('v_add_f32 v%d, v%d, abs(v%d)' % (km + 1, km + 1, km + 2))
        k('v_add_f32 v%d, v%d, abs(v%d)' % (km + 1, km + 1, km + 3))
    k('v_mov_b32 v%d, v%d' % (km + 2, km + 1))
    k('s_nop 1')
    k('v_permlane32_swap_b32 v%d, v%d' % (km + 1, km + 2))
    k('v_add_f32 v%d, v%d, v%d' % (km + 1, km + 1, km + 2))
    k('v_mul_f32 v%d, v%d, v%d' % (km, km, km + 1))
    k('v_mul_f32 v%d, 0x3f828f5c, v%d' % (km, km))
    k('v_sub_f32 v%d, v%d, v%d' % (km, km, tm))
    k('v_cmp_nle_f32 vcc, v%d, v%d' % (km, c100))
    k('s_waitcnt lgkmcnt(0)')
    k('s_mov_b32 s29, %d' % NCH)
    slow = []
    L_generic = k.newlabel('generic')
    L_fin = k.newlabel('fin')
    INIT = k.newlabel('INIT')
    k.label(INIT)
    if STAMP:
        k('s_memtime s[86:87]')
    k('s_cbranch_vccnz %s' % L_generic)

    def chunk_loop(fast):
        L_loop = k.newlabel('chunk')
        k.label(L_loop)
        k('s_waitcnt vmcnt(0)')
        k('s_barrier')
        L_nodma = k.newlabel('nodma')
        k('s_cmp_le_u32 s29, 2')
        k('s_cbranch_scc1 %s' % L_nodma)
        dma()
        k.label(L_nodma)
        for i in range(CH):
            cur, nxt = s_[i & 1], s_[1 - (i & 1)]
            pv = mf_pv((i + 1) & 1)
            sm = mf_s(nxt, vr(nm, 16), (i + 1) & 1)
            emit_list(k, rd_k(i + 2))
            emit_list(k, rd_v(i))
            if fast:
                ex = exp_ops(cur)
                k(pv[0])
                emit_list(k, ex[0:4])
                k(pv[1])
                emit_list(k, ex[4:8])
                k(sm[0])
                emit_list(k, ex[8:12])
                k(sm[1])
                emit_list(k, ex[12:16])
                k('s_nop 0')
                emit_list(k, cvt_ops(cur))
                k('s_waitcnt lgkmcnt(0)')
                k('s_nop 0')
                continue
            L_slow = k.newlabel('slow')
            L_back = k.newlabel('back')
            mx = max_ops(cur)
            k(pv[0])
            emit_list(k, mx[:4])
            k(pv[1])
            emit_list(k, mx[4:])
            k(sm[0])
            k('v_cmp_lt_f32 vcc, %s, v%d' % (THR, tm))
            k(sm[1])
            k('s_nop 4')
            k('s_cbranch_vccnz %s' % L_slow)
            k.label(L_back)
            emit_list(k, exp_ops(cur))
            k('s_nop 0')
            emit_list(k, cvt_ops(cur))
            k('s_waitcnt lgkmcnt(0)')
            k('s_nop 0')
            slow.append((L_slow, L_back, cur, nxt))
        k('s_mov_b32 s27, s28')
        k('s_add_u32 s28, s28, %d' % CHB)
        k('s_cmp_eq_u32 s28, %d' % (NBUF * CHB))
        k('s_cselect_b32 s28, 0, s28')
        k('v_add_u32 v%d, s27, v%d' % (vcur, vo16))
        k('v_add_u32 v%d, s28, v%d' % (vnxt, vo16))
        k('s_sub_u32 s29, s29, 1')
        k('s_cmp_lg_u32 s29, 0')
        k('s_cbranch_scc1 %s' % L_loop)

    chunk_loop(True)
    k('s_branch %s' % L_fin)
    k.label(L_generic)
    chunk_loop(False)
    k.label(L_fin)
    if STAMP:
        k('s_memtime s[88:89]')
    emit_list(k, mf_pv(1))
    k('s_nop 7')
    k('s_nop 7')
    k('v_mov_b32 v%d, v%d' % (tm, o_ + 8))
    k('v_mov_b32 v%d, v%d' % (tm + 1, o_ + 8))
    k('s_nop 1')
    k('v_permlane32_swap_b32 v%d, v%d' % (tm, tm + 1))
    k('v_rcp_f32 v%d, v%d' % (tm + 1, tm + 1))
    k('s_nop 0')
    for i in range(12):
        k('v_mul_f32 v%d, v%d, v%d' % (o_ + i, o_ + i, tm + 1))
    for g in range(3):
        k('v_cvt_pk_bf16_f32 v%d, v%d, v%d' % (p_ + 2 * g, o_ + 4 * g, o_ + 4 * g + 1))
        k('v_cvt_pk_bf16_f32 v%d, v%d, v%d' % (p_ + 2 * g + 1, o_ + 4 * g + 2, o_ + 4 * g + 3))
    k('s_lshr_b32 s22, s21, 1')
    k('s_mul_i32 s22, s22, 20')
    k('s_lshl_b32 s22, s22, 12')
    k('s_and_b32 s30, s21, 1')
    k('s_lshl_b32 s30, s30, 11')
    k('s_add_u32 s22, s22, s30')
    k('v_and_b32 v%d, 31, v%d' % (tm, vl))
    k('v_bfe_u32 v%d, v%d, 2, 2' % (tm + 2, tm))
    k('v_sub_u32 v%d, 0, v%d' % (tm + 2, tm + 2))
    k('v_lshlrev_b32 v%d, 6, v%d' % (tm, tm))
    k('v_add_u32 v%d, s22, v%d' % (tm, tm))
    k('v_lshrrev_b32 v%d, 5, v%d' % (tm + 1, vl))
    k('s_mul_i32 s22, s3, 20')
    for g in range(3):
        k('v_lshl_add_u32 v%d, v%d, 2, s22' % (tm + 3, tm + 1))
        if g:
            k('v_add_u32 v%d, %d, v%d' % (tm + 3, 8 * g, tm + 3))
        k('v_lshrrev_b32 v%d, 5, v%d' % (tm + 4, tm + 3))
        k('v_lshl_add_u32 v%d, v%d, 12, v%d' % (tm + 4, tm + 4, tm))
        k('v_lshrrev_b32 v%d, 3, v%d' % (tm + 5, tm + 3))
        k('v_xor_b32 v%d, v%d, v%d' % (tm + 5, tm + 5, tm + 2))
        k('v_and_b32 v%d, 3, v%d' % (tm + 5, tm + 5))
        k('v_lshl_add_u32 v%d, v%d, 4, v%d' % (tm + 4, tm + 5, tm + 4))
        k('v_bfe_u32 v%d, v%d, 2, 1' % (tm + 5, tm + 3))
        k('v_lshl_add_u32 v%d, v%d, 3, v%d' % (tm + 4, tm + 5, tm + 4))
        if g == 2:
            k('v_mov_b32 v%d, 0x7ffffff0' % (tm + 5))
            k('v_cmp_gt_u32 vcc, 32, v%d' % vl)
            k('s_nop 1')
            k('v_cndmask_b32 v%d, v%d, v%d, vcc' % (tm + 4, tm + 5, tm + 4))
        k('buffer_store_dwordx2 %s, v%d, s[12:15], 0 offen' % (vr(p_ + 2 * g, 2), tm + 4))
    if STAMP:
        k('s_waitcnt vmcnt(0)')
        k('s_memtime s[90:91]')
        k('s_memrealtime s[92:93]')
        k('s_waitcnt lgkmcnt(0)')
        Ls = k.newlabel('st')
        k('s_cmp_lg_u32 s2, %s' % STAMP)
        k('s_cbranch_scc1 %s' % Ls)
        k('s_cmp_lg_u32 s5, 0')
        k('s_cbranch_scc1 %s' % Ls)
        mk_srd(k, 8, PTR('dbg'), 0, 256)
        k('s_sub_u32 s92, s92, s94')
        k('s_add_u32 s92, s92, s84')
        for i in range(1, 5):
            k('s_sub_u32 s%d, s%d, s84' % (84 + 2 * i, 84 + 2 * i))
            k('v_mov_b32 v1, s%d' % (84 + 2 * i))
            k('v_mov_b32 v2, 0')
            k('buffer_store_dword v1, v2, s[8:11], 0 offen offset:%d' % (4 * i))
        k.label(Ls)
    k('s_branch %s' % L_end)
    for (L_slow, L_back, cur, nxt) in slow:
        k.label(L_slow)
        k('s_nop 7')
        k('s_nop 7')
        rowmax()
        k('v_max_f32 v%d, 0, v%d' % (tm, tm))
        k('v_sub_f32 v%d, 0, v%d' % (tm + 1, tm))
        k('v_exp_f32 v%d, v%d' % (tm + 1, tm + 1))
        for i in range(16):
            k('v_sub_f32 v%d, v%d, v%d' % (nm + i, nm + i, tm))
        for i in range(16):
            k('v_sub_f32 v%d, v%d, v%d' % (cur + i, cur + i, tm))
        for i in range(16):
            k('v_sub_f32 v%d, v%d, v%d' % (nxt + i, nxt + i, tm))
        for i in range(16):
            k('v_mul_f32 v%d, v%d, v%d' % (o_ + i, o_ + i, tm + 1))
        k('s_branch %s' % L_back)
    k.label(L_end)
    k('s_endpgm')
    idx = k.lines.index(INIT + ':')
    init = ['    v_mov_b32 v%d, 0' % (p_ + i) for i in range(8)] + \
           ['    v_mov_b32 v%d, 0' % (vfs[1] + i) for i in range(8)]
    k.lines[idx:idx] = init
    return k, va.n, 0, NBUF * CHB, NWG_ATTN
```

```python
from common import *
from gemm import fbits, PTR, QSCALE, Ctx


import os
STAMP = os.environ.get('STAMP')


def gemm32_kernel(name, *, K, NB, mtiles, ntiles, xsrc, XS, wsrcs, WS, N, epi, cs_base, dst=None, proto=1,
                  xcdmap=False):
    k = Kern(name)
    nst = [0]

    def stamp():
        if STAMP:
            k('s_memtime s[%d:%d]' % (84 + 2 * nst[0], 85 + 2 * nst[0]))
            nst[0] += 1
    c = Ctx()
    TM = TN = 128
    nmat = len(wsrcs)
    S = K // 64
    XB = TM * 128
    WB = 64 * 256
    STAGE = XB + nmat * WB
    SB = 2048
    AUX = 0
    LDS = SB + NB * STAGE
    NWG = mtiles * ntiles
    DPW = 4 + 4 * nmat
    c.__dict__.update(locals())

    if xcdmap:
        NWG = 256
    L_end = k.newlabel('end')
    k('s_cmp_ge_u32 s2, %d' % NWG)
    k('s_cbranch_scc1 %s' % L_end)
    stamp()
    k('s_load_dwordx16 s[64:79], s[0:1], 0')
    k('s_load_dwordx4 s[80:83], s[0:1], 64')
    if xcdmap:
        NWG = 256
        k('s_and_b32 s3, s2, 1')
        k('s_lshl_b32 s3, s3, 3')
        k('s_bfe_u32 s4, s2, 0x30003')
        k('s_add_u32 s3, s3, s4')
        k('s_lshr_b32 s5, s2, 6')
        k('s_bfe_u32 s6, s2, 0x20001')
        k('s_lshl_b32 s4, s6, 2')
        k('s_cmp_eq_u32 s6, 3')
        k('s_cselect_b32 s7, 1, 0')
        k('s_sub_u32 s4, s4, s7')
        k('s_add_u32 s4, s4, s5')
        k('s_cmp_ge_u32 s6, 2')
        k('s_cselect_b32 s7, 3, 4')
        k('s_cmp_ge_u32 s5, s7')
        k('s_cbranch_scc1 %s' % L_end)
    else:
        k('s_and_b32 s3, s2, %d' % (mtiles - 1))
        k('s_lshr_b32 s4, s2, %d' % (mtiles.bit_length() - 1))
    if os.environ.get('FORCE0'):
        k('s_mov_b32 s3, 0')
        k('s_mov_b32 s4, 0')
    va = VAlloc(1)
    vl = va.get()
    k('v_and_b32 v%d, 63, v0' % vl)
    k('v_lshrrev_b32 v2, 6, v0')
    va.get()
    k('s_nop 0')
    k('v_readfirstlane_b32 s5, v2')
    k('s_lshr_b32 s62, s5, 2')
    k('s_and_b32 s5, s5, 3')
    k('s_mul_i32 s56, s3, %d' % TM)
    k('s_mul_i32 s57, s4, %d' % TN)
    k('s_lshr_b32 s6, s5, 1')
    k('s_and_b32 s7, s5, 1')
    ta = va.get()
    tb_ = va.get()
    vxd = [va.get(), va.get()]
    vwd = va.get()
    k('s_mov_b32 s58, %d' % XS)
    for par in range(2):
        k('v_lshrrev_b32 v%d, 4, v%d' % (ta, vl))
        if par:
            k('v_add_u32 v%d, 4, v%d' % (ta, ta))
        k('v_xor_b32 v%d, v%d, v%d' % (ta, ta, vl))
        k('v_and_b32 v%d, 7, v%d' % (ta, ta))
        k('v_lshrrev_b32 v%d, 3, v%d' % (tb_, vl))
        k('v_add_u32 v%d, s56, v%d' % (tb_, tb_))
        k('v_mul_lo_u32 v%d, v%d, s58' % (vxd[par], tb_))
        k('v_lshl_add_u32 v%d, v%d, 4, v%d' % (vxd[par], ta, vxd[par]))
    k('v_lshrrev_b32 v%d, 4, v%d' % (ta, vl))
    k('v_lshlrev_b32 v%d, 2, v%d' % (tb_, ta))
    k('v_xor_b32 v%d, v%d, v%d' % (tb_, tb_, vl))
    k('v_and_b32 v%d, 15, v%d' % (tb_, tb_))
    k('v_mul_u32_u24 v%d, %d, v%d' % (vwd, WS, ta))
    k('v_lshl_add_u32 v%d, v%d, 4, v%d' % (vwd, tb_, vwd))
    k('s_lshl_b32 s58, s57, 1')
    k('v_add_u32 v%d, s58, v%d' % (vwd, vwd))
    k('s_lshl_b32 s52, s5, 12')
    k('s_mul_i32 s48, s5, %d' % (32 * XS))
    k('s_mul_i32 s49, s5, %d' % (16 * WS))
    k('s_mov_b32 s50, %d' % SB)
    k('s_mov_b32 s51, %d' % SB)
    k('s_waitcnt lgkmcnt(0)')

    def srd_of(sd, src):
        if src[0] == 'ptr':
            mk_srd(k, sd, PTR(src[1]), 0, KSIZE[src[1]])
        else:
            mk_srd(k, sd, PTR('ws'), src[1], src[2])
    srd_of(8, xsrc)
    for m, w in enumerate(wsrcs):
        mk_srd(k, 12 + 4 * m, PTR(w), 0, KSIZE[w])

    def dma_q(qi):
        ops = []
        g = ['s_add_u32 s53, s50, s52',
             's_add_u32 m0, s53, %d' % (qi * 1024),
             's_add_u32 s54, s48, %d' % (qi * 8 * XS),
             'buffer_load_dwordx4 v%d, s[8:11], s54 offen lds' % vxd[qi & 1]]
        ops.append(g)
        for m in range(nmat):
            g = ['s_add_u32 m0, s53, %d' % (XB + m * WB + qi * 1024),
                 's_add_u32 s54, s49, %d' % (qi * 4 * WS),
                 'buffer_load_dwordx4 v%d, s[%d:%d], s54 offen lds' % (vwd, 12 + 4 * m, 15 + 4 * m)]
            ops.append(g)
        if qi == 3:
            ops.append(['s_add_u32 s48, s48, 128', 's_add_u32 s49, s49, %d' % (64 * WS),
                        's_add_u32 s50, s50, %d' % STAGE, 's_cmp_eq_u32 s50, %d' % (SB + NB * STAGE),
                        's_cselect_b32 s50, %d, s50' % SB])
        return ops

    L_comp = k.newlabel('comp')
    k('s_cmp_eq_u32 s62, 0')
    k('s_cbranch_scc1 %s' % L_comp)
    for s in range(NB - 1):
        for qi in range(4):
            emit_list(k, dma_q(qi))
    if proto == 2:
        for qi in range(4):
            emit_list(k, dma_q(qi))
        k('s_waitcnt vmcnt(%d)' % ((NB - 1) * DPW))
        k('s_barrier')
        k('s_waitcnt vmcnt(%d)' % ((NB - 2) * DPW))
        k('s_barrier')
        nl = S - NB
        if nl:
            k('s_mov_b32 s55, %d' % nl)
            Lld = k.newlabel('ld')
            k.label(Lld)
            k('s_barrier')
            for qi in range(4):
                emit_list(k, dma_q(qi))
            k('s_waitcnt vmcnt(%d)' % ((NB - 2) * DPW))
            k('s_barrier')
            k('s_sub_u32 s55, s55, 1')
            k('s_cmp_lg_u32 s55, 0')
            k('s_cbranch_scc1 %s' % Lld)
        for st in range(nl + 1, S - 1):
            k('s_barrier')
            k('s_waitcnt vmcnt(%d)' % (max(0, S - 1 - (st + 1)) * DPW))
            k('s_barrier')
    else:
        k('s_waitcnt vmcnt(%d)' % ((NB - 2) * DPW))
        k('s_barrier')
        nl = S - NB + 1
        k('s_mov_b32 s55, %d' % nl)
        Lld = k.newlabel('ld')
        k.label(Lld)
        k('s_waitcnt vmcnt(%d)' % ((NB - 3) * DPW))
        k('s_barrier')
        for qi in range(4):
            emit_list(k, dma_q(qi))
        k('s_sub_u32 s55, s55, 1')
        k('s_cmp_lg_u32 s55, 0')
        k('s_cbranch_scc1 %s' % Lld)
        for j in range(nl + 1, S):
            k('s_waitcnt vmcnt(%d)' % (max(0, S - 1 - j) * DPW))
            k('s_barrier')
    k('s_endpgm')
    k.label(L_comp)

    mk_srd(k, 20, PTR('ws'), 0, 0x100000)
    if dst is not None:
        srd_of(24, dst)
    vt = va.get(16, 4)
    vcs = va.get()
    vta = va.get()
    k('v_add_u32 v%d, s56, v0' % vta)
    k('v_lshlrev_b32 v%d, 6, v%d' % (vta, vta))
    k('v_add_u32 v%d, 0x%x, v%d' % (vta, ST_OFF, vta))
    for i in range(4):
        k('buffer_load_dwordx4 %s, v%d, s[20:23], 0 offen offset:%d' % (vr(vt + 4 * i, 4), vta, 16 * i))
    vci = va.get()
    k('v_add_u32 v%d, s57, v0' % vci)
    if nmat == 2:
        k('v_mov_b32 v%d, %d' % (vcs, cs_base[0]))
        k('v_mov_b32 v%d, %d' % (vta, cs_base[1] - TN))
        k('v_cmp_gt_u32 vcc, %d, v0' % TN)
        k('s_nop 1')
        k('v_cndmask_b32 v%d, v%d, v%d, vcc' % (vcs, vta, vcs))
        k('v_add_u32 v%d, v%d, v%d' % (vci, vci, vcs))
    elif cs_base[0]:
        k('v_add_u32 v%d, %d, v%d' % (vci, cs_base[0], vci))
    k('v_lshlrev_b32 v%d, 2, v%d' % (vci, vci))
    k('buffer_load_dword v%d, v%d, s[20:23], 0 offen' % (vcs, vci))

    vxr = [va.get() for _ in range(4)]
    vwr = [va.get() for _ in range(2)]
    vxa = [va.get() for _ in range(4)]
    vwa = [va.get() for _ in range(2)]
    vh = va.get()
    vt31 = va.get()
    k('v_lshrrev_b32 v%d, 5, v%d' % (vh, vl))
    k('v_and_b32 v%d, 31, v%d' % (vt31, vl))
    k('s_lshl_b32 s58, s6, 13')
    for s in range(4):
        k('v_bfe_u32 v%d, v%d, 1, 3' % (ta, vt31))
        k('v_add_u32 v%d, %d, v%d' % (tb_, 2 * s, vh))
        k('v_xor_b32 v%d, v%d, v%d' % (ta, ta, tb_))
        k('v_lshlrev_b32 v%d, 7, v%d' % (tb_, vt31))
        k('v_lshl_add_u32 v%d, v%d, 4, v%d' % (vxr[s], ta, tb_))
        k('v_add_u32 v%d, s58, v%d' % (vxr[s], vxr[s]))
    vrr = va.get()
    k('v_bfe_u32 v%d, v%d, 2, 2' % (vrr, vl))
    for nb in range(2):
        k('s_lshl_b32 s58, s7, 1')
        k('s_add_u32 s58, s58, %d' % nb)
        k('v_xor_b32 v%d, s58, v%d' % (ta, vrr))
        k('v_lshlrev_b32 v%d, 6, v%d' % (ta, ta))
        k('v_lshl_add_u32 v%d, v%d, 8, v%d' % (ta, vrr, ta))
        k('v_lshl_add_u32 v%d, v%d, 11, v%d' % (ta, vh, ta))
        k('v_and_b32 v%d, 1, v%d' % (tb_, vl))
        k('v_lshl_add_u32 v%d, v%d, 5, v%d' % (ta, tb_, ta))
        k('v_bfe_u32 v%d, v%d, 4, 1' % (tb_, vl))
        k('v_lshl_add_u32 v%d, v%d, 4, v%d' % (ta, tb_, ta))
        k('v_bfe_u32 v%d, v%d, 1, 1' % (tb_, vl))
        k('v_lshl_add_u32 v%d, v%d, 3, v%d' % (ta, tb_, ta))
        k('v_add_u32 v%d, %d, v%d' % (vwr[nb], XB, ta))

    xf = [[va.get(4, 4) for _ in range(2)] for _ in range(3)]
    wf = [[[va.get(4, 4) for _ in range(2)] for _ in range(nmat)] for _ in range(3)]
    nacc = nmat * 4 * 16
    accb = va.get(nacc, 4)
    acc = lambda m, nb, tb: accb + ((m * 2 + nb) * 2 + tb) * 16

    def aux_hook():
        k('s_waitcnt vmcnt(0)')
        for i in range(1, 8):
            k('v_add_f32 v%d, v%d, v%d' % (vt, vt, vt + 2 * i))
            k('v_add_f32 v%d, v%d, v%d' % (vt + 1, vt + 1, vt + 2 * i + 1))
        k('v_mul_f32 v%d, %s, v%d' % (vt, fbits(1.0 / D), vt))
        k('v_mul_f32 v%d, %s, v%d' % (vt + 1, fbits(1.0 / D), vt + 1))
        k('v_fma_f32 v%d, -v%d, v%d, v%d' % (vt + 1, vt, vt, vt + 1))
        k('v_max_f32 v%d, 0, v%d' % (vt + 1, vt + 1))
        k('v_add_f32 v%d, %s, v%d' % (vt + 1, fbits(1e-5), vt + 1))
        k('v_rsq_f32 v%d, v%d' % (vt + 1, vt + 1))
        k('s_nop 0')
        k('v_mul_f32 v%d, v%d, v%d' % (vt, vt, vt + 1))
        k('v_sub_f32 v%d, 0, v%d' % (vt, vt))
        k('v_lshlrev_b32 v%d, 3, v0' % ta)
        L1 = k.newlabel('aux')
        k('v_cmp_gt_u32 vcc, %d, v0' % TM)
        k('s_and_saveexec_b64 s[60:61], vcc')
        k('s_cbranch_execz %s' % L1)
        k('ds_write_b64 v%d, %s offset:%d' % (ta, vr(vt, 2), AUX))
        k.label(L1)
        k('s_mov_b64 exec, s[60:61]')
        L2 = k.newlabel('aux')
        k('v_lshlrev_b32 v%d, 2, v0' % ta)
        k('v_cmp_gt_u32 vcc, %d, v0' % (nmat * TN))
        k('s_and_saveexec_b64 s[60:61], vcc')
        k('s_cbranch_execz %s' % L2)
        k('ds_write_b32 v%d, v%d offset:%d' % (ta, vcs, AUX + TM * 8))
        k.label(L2)
        k('s_mov_b64 exec, s[60:61]')

    c.__dict__.update(locals())

    def read_ops(st, s):
        ops = []
        for tb in range(2):
            ops.append('ds_read_b128 %s, v%d offset:%d' % (vr(xf[st][tb], 4), vxa[s], tb * 4096))
        for m in range(nmat):
            for nb in range(2):
                for i in range(2):
                    ops.append('ds_read_b64_tr_b16 %s, v%d offset:%d' % (
                        vr(wf[st][m][nb] + 2 * i, 2), vwa[nb], m * WB + (16 * s + 4 * i) * 256))
        return ops

    def addr_ops():
        ops = ['v_add_u32 v%d, s51, v%d' % (vxa[s], vxr[s]) for s in range(4)]
        ops += ['v_add_u32 v%d, s51, v%d' % (vwa[nb], vwr[nb]) for nb in range(2)]
        ops += ['s_add_u32 s51, s51, %d' % STAGE, 's_cmp_eq_u32 s51, %d' % (SB + NB * STAGE),
                's_cselect_b32 s51, %d, s51' % SB]
        return ops

    def mfma_ops(st, swap, zero=False):
        ops = []
        for m in range(nmat):
            for nb in range(2):
                for tb in range(2):
                    a, b = vr(wf[st][m][nb], 4), vr(xf[st][tb], 4)
                    if swap:
                        a, b = b, a
                    d = vr(acc(m, nb, tb), 16)
                    ops.append('v_mfma_f32_32x32x16_bf16 %s, %s, %s, %s' % (d, a, b, '0' if zero else d))
        return ops

    def iteration_old(swap, first, do_dma, vm):
        for s in range(4):
            if s == 0:
                k('s_waitcnt lgkmcnt(0)')
                k('s_barrier')
                emit_list(k, addr_ops())
            mem = read_ops(s & 1, s)
            if os.environ.get('NOREAD'):
                mem = mem[:int(os.environ['NOREAD'])] + ['s_nop 0', 's_nop 0']
            mf = [] if (first and s == 0) else mfma_ops((s + 1) & 1, swap)
            emit_list(k, mem[:2])
            emit_list(k, interleave(mf, mem[2:]))
            k('s_waitcnt lgkmcnt(0)')

    NR = 2 + 4 * nmat

    def substep(t, swap):
        T = 4 * S
        mem = []
        if proto == 2 and t % 4 == 0 and t >= 4 and t + 4 < T:
            k('s_barrier')
        if t + 2 < T:
            if (t + 2) % 4 == 0:
                k('s_barrier')
                emit_list(k, addr_ops())
            mem = read_ops((t + 2) % 3, (t + 2) % 4)
        mf = mfma_ops(t % 3, swap, zero=(t == 0))
        emit_list(k, mem[:2])
        emit_list(k, interleave(mf, mem[2:]))
        if t + 1 < T:
            k('s_waitcnt lgkmcnt(%d)' % (NR if t + 2 < T else 0))

    def main(swap):
        nst[0] = 1
        stamp()
        k('s_barrier')
        emit_list(k, addr_ops())
        emit_list(k, read_ops(0, 0))
        emit_list(k, read_ops(1, 1))
        k('s_waitcnt lgkmcnt(%d)' % NR)
        for t in range(4):
            substep(t, swap)
        stamp()
        aux_hook()
        nloop = (S - 2) // 3
        if nloop:
            k('s_mov_b32 s55, %d' % nloop)
            lab = k.newlabel('loop')
            k.label(lab)
            for t in range(4, 16):
                substep(t, swap)
            k('s_sub_u32 s55, s55, 1')
            k('s_cmp_lg_u32 s55, 0')
            k('s_cbranch_scc1 %s' % lab)
        for t in range(4 + 12 * nloop, 4 * S):
            substep(t, swap)
        k('s_nop 7')
        k('s_nop 7')
        stamp()

    c.main = main
    epi(k, c)
    if STAMP:
        k('s_waitcnt vmcnt(0)')
        nst[0] = 4
        stamp()
        k('s_waitcnt lgkmcnt(0)')
        Ls = k.newlabel('st')
        k('s_cmp_lg_u32 s2, %s' % STAMP)
        k('s_cbranch_scc1 %s' % Ls)
        k('s_cmp_lg_u32 s5, 0')
        k('s_cbranch_scc1 %s' % Ls)
        mk_srd(k, 8, PTR('dbg'), 0, 256)
        for i in range(1, 5):
            k('s_sub_u32 s%d, s%d, s84' % (84 + 2 * i, 84 + 2 * i))
            k('v_mov_b32 v1, s%d' % (84 + 2 * i))
            k('v_mov_b32 v2, 0')
            k('buffer_store_dword v1, v2, s[8:11], 0 offen offset:%d' % (4 * i))
        k.label(Ls)
    k.label(L_end)
    k('s_endpgm')
    return k, va.n, 0, LDS, NWG


def epi32_qkv(k, c):
    va = c.va
    vl, vh, vt31 = c.vl, c.vh, c.vt31
    L_v = k.newlabel('vpath')
    L_done = k.newlabel('qkvdone')
    mk_srd(k, 24, PTR('ws'), QF_OFF, 12 << 20)
    k('s_cmp_ge_u32 s4, 10')
    k('s_cbranch_scc1 %s' % L_v)
    c.main(False)
    big = va.get(64, 4)
    vst = big
    vto = big + 4
    vno = big + 8
    vcsr = big + 16
    vp = big + 48
    vx = big + 56
    k('s_cmp_lt_u32 s4, 5')
    k('s_cselect_b32 s59, %s, 1.0' % fbits(QSCALE))
    k('s_lshl_b32 s58, s6, 9')
    k('v_lshlrev_b32 v%d, 3, v%d' % (vx, vt31))
    k('v_add_u32 v%d, s58, v%d' % (vx, vx))
    for tb in range(2):
        k('ds_read_b64 %s, v%d offset:%d' % (vr(vst + 2 * tb, 2), vx, c.AUX + tb * 256))
    k('s_lshl_b32 s58, s7, 8')
    k('v_lshlrev_b32 v%d, 6, v%d' % (vx + 1, vh))
    k('v_add_u32 v%d, s58, v%d' % (vx + 1, vx + 1))
    for nb in range(2):
        for j in range(4):
            k('ds_read_b128 %s, v%d offset:%d' % (vr(vcsr + 16 * nb + 4 * j, 4), vx + 1,
                                                   c.AUX + c.TM * 8 + nb * 128 + j * 16))
    k('s_lshl_b32 s58, s4, 5')
    k('s_lshl_b32 s60, s7, 4')
    k('s_add_u32 s58, s58, s60')
    k('s_cmp_lt_u32 s4, 5')
    k('s_cselect_b32 s61, 0, 160')
    k('s_cselect_b32 s60, 0, 0x400000')
    k('s_sub_u32 s58, s58, s61')
    k('s_mov_b32 s61, 52429')
    for nb in range(2):
        for j in range(4):
            o = vno + 4 * nb + j
            k('v_lshl_add_u32 v%d, v%d, 2, s58' % (vx + 1, vh))
            k('v_add_u32 v%d, %d, v%d' % (vx + 1, nb * 8 + j, vx + 1))
            k('v_mul_lo_u32 v%d, v%d, s61' % (vx + 2, vx + 1))
            k('v_lshrrev_b32 v%d, 18, v%d' % (vx + 2, vx + 2))
            k('v_mul_u32_u24 v%d, 5, v%d' % (vx + 3, vx + 2))
            k('v_sub_u32 v%d, v%d, v%d' % (vx + 3, vx + 1, vx + 3))
            k('v_lshlrev_b32 v%d, 17, v%d' % (o, vx + 2))
            k('v_lshrrev_b32 v%d, 2, v%d' % (vx + 1, vx + 3))
            k('v_lshl_add_u32 v%d, v%d, 10, v%d' % (o, vx + 1, o))
            k('v_bfe_u32 v%d, v%d, 1, 1' % (vx + 1, vx + 3))
            k('v_lshl_add_u32 v%d, v%d, 9, v%d' % (o, vx + 1, o))
            k('v_and_b32 v%d, 1, v%d' % (vx + 1, vx + 3))
            k('v_lshl_add_u32 v%d, v%d, 3, v%d' % (o, vx + 1, o))
            k('v_add_u32 v%d, s60, v%d' % (o, o))
    k('s_lshl_b32 s58, s3, 2')
    k('s_lshl_b32 s60, s6, 1')
    k('s_add_u32 s58, s58, s60')
    k('s_lshl_b32 s58, s58, 11')
    k('v_lshlrev_b32 v%d, 4, v%d' % (vto, vt31))
    k('v_add_u32 v%d, s58, v%d' % (vto, vto))
    for nb in range(2):
        for j in range(4):
            k('v_add_u32 v%d, v%d, v%d' % (vno + 4 * nb + j, vno + 4 * nb + j, vto))
    k('s_waitcnt lgkmcnt(0)')
    for tb in range(2):
        k('v_mul_f32 v%d, s59, v%d' % (vst + 2 * tb, vst + 2 * tb))
        k('v_mul_f32 v%d, s59, v%d' % (vst + 2 * tb + 1, vst + 2 * tb + 1))
    vkm = vx + 3
    k('v_mov_b32 v%d, 0' % vkm)
    for tb in range(2):
        for nb in range(2):
            a = c.acc(0, nb, tb)
            for j in range(4):
                q = vp + 4 * (j & 1)
                P = lambda r: 'v[%d:%d]' % (r, r + 1)
                st_ = P(vst + 2 * tb)
                for i in range(0, 4, 2):
                    k('v_pk_mul_f32 %s, %s, %s op_sel:[0,1] op_sel_hi:[1,1]' % (P(q + i), P(a + 4 * j + i), st_))
                for i in range(0, 4, 2):
                    k('v_pk_fma_f32 %s, %s, %s, %s op_sel_hi:[1,0,1]' % (
                        P(q + i), P(vcsr + 16 * nb + 4 * j + i), st_, P(q + i)))
                k('v_max3_f32 v%d, abs(v%d), abs(v%d), v%d' % (vkm, q, q + 1, vkm))
                k('v_max3_f32 v%d, abs(v%d), abs(v%d), v%d' % (vkm, q + 2, q + 3, vkm))
                k('v_cvt_pk_bf16_f32 v%d, v%d, v%d' % (q, q, q + 1))
                k('v_cvt_pk_bf16_f32 v%d, v%d, v%d' % (q + 1, q + 2, q + 3))
                k('buffer_store_dwordx2 %s, v%d, s[24:27], 0 offen offset:%d' % (vr(q, 2), vno + 4 * nb + j, tb * 2048))
    k('s_cmp_lt_u32 s4, 5')
    k('s_cbranch_scc1 %s' % L_done)
    for sh in (1, 2, 4, 8, 16, 32):
        k('v_xor_b32 v%d, %d, v%d' % (vx, sh, vl))
        k('v_lshlrev_b32 v%d, 2, v%d' % (vx, vx))
        k('ds_bpermute_b32 v%d, v%d, v%d' % (vx + 1, vx, vkm))
        k('s_waitcnt lgkmcnt(0)')
        k('v_max_f32 v%d, v%d, v%d' % (vkm, vkm, vx + 1))
    k('s_sub_u32 s58, s2, 80')
    k('s_lshl_b32 s58, s58, 2')
    k('s_add_u32 s58, s58, s5')
    k('s_lshl_b32 s58, s58, 2')
    k('s_add_u32 s58, s58, 0x%x' % KM_OFF)
    k('v_mov_b32 v%d, s58' % vx)
    k('buffer_store_dword v%d, v%d, s[20:23], 0 offen' % (vkm, vx))
    k('s_branch %s' % L_done)

    k.label(L_v)
    c.main(True)
    vst2 = big
    vcs2 = big + 32
    vno2 = big + 34
    vy = big + 36
    vx = big + 56
    k('v_bfe_u32 v%d, v%d, 2, 1' % (vx, vl))
    k('v_lshlrev_b32 v%d, 4, v%d' % (vx, vx))
    k('v_bfe_u32 v%d, v%d, 3, 2' % (vx + 1, vl))
    k('v_lshl_add_u32 v%d, v%d, 2, v%d' % (vx, vx + 1, vx))
    k('v_and_b32 v%d, 3, v%d' % (vx + 1, vl))
    k('v_add_u32 v%d, v%d, v%d' % (vx, vx, vx + 1))
    k('s_lshl_b32 s58, s7, 6')
    k('v_add_u32 v%d, s58, v%d' % (vx, vx))
    k('v_lshlrev_b32 v%d, 2, v%d' % (vx + 1, vx))
    for nb in range(2):
        k('ds_read_b32 v%d, v%d offset:%d' % (vcs2 + nb, vx + 1, c.AUX + c.TM * 8 + nb * 128))
    k('s_sub_u32 s58, s57, 1280')
    k('s_movk_i32 s61, 3277')
    for nb in range(2):
        o = vno2 + nb
        k('v_add_u32 v%d, s58, v%d' % (vx + 2, vx))
        if nb:
            k('v_add_u32 v%d, 32, v%d' % (vx + 2, vx + 2))
        k('v_mul_lo_u32 v%d, v%d, s61' % (vx + 3, vx + 2))
        k('v_lshrrev_b32 v%d, 16, v%d' % (vx + 3, vx + 3))
        k('v_mul_u32_u24 v%d, 20, v%d' % (o, vx + 3))
        k('v_sub_u32 v%d, v%d, v%d' % (o, vx + 2, o))
        k('v_lshlrev_b32 v%d, 4, v%d' % (o, o))
        k('v_lshl_add_u32 v%d, v%d, 17, v%d' % (o, vx + 3, o))
        k('v_lshl_add_u32 v%d, v%d, 9, v%d' % (o, vh, o))
    k('s_lshl_b32 s58, s3, 2')
    k('s_lshl_b32 s60, s6, 1')
    k('s_add_u32 s58, s58, s60')
    k('s_lshl_b32 s58, s58, 11')
    k('s_add_u32 s58, s58, 0x%x' % (VF_OFF - QF_OFF))
    for nb in range(2):
        k('v_add_u32 v%d, s58, v%d' % (vno2 + nb, vno2 + nb))
    k('s_lshl_b32 s58, s6, 9')
    k('v_lshlrev_b32 v%d, 5, v%d' % (vx + 1, vh))
    k('v_add_u32 v%d, s58, v%d' % (vx + 1, vx + 1))
    for tb in range(2):
        for j in range(4):
            for hh in range(2):
                k('ds_read_b128 %s, v%d offset:%d' % (vr(vst2 + 8 * j + 4 * hh, 4), vx + 1,
                                                       c.AUX + tb * 256 + j * 64 + hh * 16))
        k('s_waitcnt lgkmcnt(0)')
        for nb in range(2):
            a = c.acc(0, nb, tb)
            for t in range(2):
                for r in range(8):
                    rr = 8 * t + r
                    k('v_mul_f32 v%d, v%d, v%d' % (vy + r, a + rr, vst2 + 2 * rr + 1))
                    k('v_fmac_f32 v%d, v%d, v%d' % (vy + r, vcs2 + nb, vst2 + 2 * rr))
                for i in range(4):
                    k('v_cvt_pk_bf16_f32 v%d, v%d, v%d' % (vy + i, vy + 2 * i, vy + 2 * i + 1))
                k('buffer_store_dwordx4 %s, v%d, s[24:27], 0 offen offset:%d' % (
                    vr(vy, 4), vno2 + nb, tb * 2048 + t * 1024))
                k('s_nop 1')
    k.label(L_done)


def epi32_geglu(k, c):
    va = c.va
    vl, vh, vt31 = c.vl, c.vh, c.vt31
    c.main(False)
    fb = c.xf[0][0]
    vcg = c.vt
    vcu = fb
    tg = fb + 16
    tu = fb + 24
    vst = fb + 32
    vx = fb + 36
    vo = fb + 40
    t2 = fb + 44
    vC = fb + 52
    k('s_lshl_b32 s58, s6, 9')
    k('v_lshlrev_b32 v%d, 3, v%d' % (vx, vt31))
    k('v_add_u32 v%d, s58, v%d' % (vx, vx))
    for tb in range(2):
        k('ds_read_b64 %s, v%d offset:%d' % (vr(vst + 2 * tb, 2), vx, c.AUX + tb * 256))
    k('s_lshl_b32 s58, s3, 1')
    k('s_add_u32 s58, s58, s6')
    k('s_mul_i32 s58, s58, 54')
    k('s_lshl_b32 s60, s4, 2')
    k('s_add_u32 s58, s58, s60')
    k('s_lshl_b32 s60, s7, 1')
    k('s_add_u32 s58, s58, s60')
    k('s_lshl_b32 s58, s58, 12')
    k('v_bfe_u32 v%d, v%d, 2, 2' % (vx + 1, vt31))
    k('v_sub_u32 v%d, 0, v%d' % (vx + 1, vx + 1))
    k('v_lshlrev_b32 v%d, 1, v%d' % (vx + 2, vh))
    k('v_xor_b32 v%d, v%d, v%d' % (vx + 1, vx + 1, vx + 2))
    k('v_and_b32 v%d, 3, v%d' % (vx + 1, vx + 1))
    k('v_lshlrev_b32 v%d, 6, v%d' % (vo, vt31))
    k('v_add_u32 v%d, s58, v%d' % (vo, vo))
    k('v_xor_b32 v%d, 1, v%d' % (vx + 2, vx + 1))
    k('v_lshl_add_u32 v%d, v%d, 4, v%d' % (vo + 1, vx + 2, vo))
    k('v_lshl_add_u32 v%d, v%d, 4, v%d' % (vo, vx + 1, vo))
    k('s_lshl_b32 s58, s7, 6')
    k('s_add_u32 s58, s58, s57')
    k('s_cmp_lt_u32 s58, %d' % c.N)
    k('s_cselect_b32 s58, 0, 0x7ff00000')
    k('v_add_u32 v%d, s58, v%d' % (vo, vo))
    k('v_add_u32 v%d, s58, v%d' % (vo + 1, vo + 1))
    C1 = -2.0 * 1.4426950408889634 * 0.7978845608028654
    C2 = C1 * 0.044715
    k('v_mov_b32 v%d, %s' % (vC, fbits(C1)))
    k('v_mov_b32 v%d, %s' % (vC + 1, fbits(C2)))
    k('v_mov_b32 v%d, 1.0' % (vC + 2))
    k('s_lshl_b32 s58, s7, 8')
    k('v_lshlrev_b32 v%d, 6, v%d' % (vx + 1, vh))
    k('v_add_u32 v%d, s58, v%d' % (vx + 1, vx + 1))
    for nb in range(2):
        for j in range(4):
            k('ds_read_b128 %s, v%d offset:%d' % (vr(vcg + 4 * j, 4), vx + 1, c.AUX + c.TM * 8 + nb * 128 + j * 16))
            k('ds_read_b128 %s, v%d offset:%d' % (vr(vcu + 4 * j, 4), vx + 1,
                                                   c.AUX + c.TM * 8 + c.TN * 4 + nb * 128 + j * 16))
        k('s_waitcnt lgkmcnt(0)')
        for tb in range(2):
            ag = c.acc(0, nb, tb)
            au = c.acc(1, nb, tb)
            for half in range(2):
                P = lambda r: 'v[%d:%d]' % (r, r + 1)
                st_ = P(vst + 2 * tb)
                for i in range(0, 8, 2):
                    r = 8 * half + i
                    k('v_pk_mul_f32 %s, %s, %s op_sel:[0,1] op_sel_hi:[1,1]' % (P(tg + i), P(ag + r), st_))
                    k('v_pk_mul_f32 %s, %s, %s op_sel:[0,1] op_sel_hi:[1,1]' % (P(tu + i), P(au + r), st_))
                    k('v_pk_fma_f32 %s, %s, %s, %s op_sel_hi:[1,0,1]' % (P(tg + i), P(vcg + r), st_, P(tg + i)))
                    k('v_pk_fma_f32 %s, %s, %s, %s op_sel_hi:[1,0,1]' % (P(tu + i), P(vcu + r), st_, P(tu + i)))
                for i in range(0, 8, 2):
                    k('v_pk_mul_f32 %s, %s, %s' % (P(t2 + i), P(tg + i), P(tg + i)))
                    k('v_pk_mul_f32 %s, %s, %s' % (P(tu + i), P(tu + i), P(tg + i)))
                    k('v_pk_fma_f32 %s, %s, %s, %s op_sel:[0,1,0] op_sel_hi:[1,1,0]' % (P(t2 + i), P(t2 + i), P(vC), P(vC)))
                    k('v_pk_mul_f32 %s, %s, %s' % (P(t2 + i), P(t2 + i), P(tg + i)))
                for i in range(8):
                    k('v_exp_f32 v%d, v%d' % (t2 + i, t2 + i))
                k('s_nop 0')
                for i in range(0, 8, 2):
                    k('v_pk_add_f32 %s, %s, %s op_sel_hi:[1,0]' % (P(t2 + i), P(t2 + i), P(vC + 2)))
                for i in range(8):
                    k('v_rcp_f32 v%d, v%d' % (t2 + i, t2 + i))
                k('s_nop 0')
                for i in range(0, 8, 2):
                    k('v_pk_mul_f32 %s, %s, %s' % (P(tg + i), P(tu + i), P(t2 + i)))
                for i in range(4):
                    k('v_cvt_pk_bf16_f32 v%d, v%d, v%d' % (tu + i, tg + 2 * i, tg + 2 * i + 1))
                if nb:
                    k('s_movk_i32 s61, 4096')
                k('buffer_store_dwordx4 %s, v%d, s[24:27], %s offen offset:%d' % (
                    vr(tu, 4), vo + half, 's61' if nb else '0', tb * 2048))
                k('s_nop 1')
```

```python
from common import *
from gemm import fbits, PTR, Ctx
import os
STAMP = os.environ.get('STAMP')


def gemmsk_kernel(name, *, K, NB, xsrc, XS, wsrc, resid, dst, want_stats=True):
    k = Kern(name)
    TM, TN, N, WS = 64, 80, 640, 1280
    mtiles, ntiles = 32, 8
    NWG = mtiles * ntiles
    S = K // 32
    base, rem = S // 4, S % 4
    XB = 4096
    WB = 5120
    STAGE = XB + WB
    WV = NB * STAGE
    LDS = max(4 * WV, 4 * 20480)
    DPW = 9
    nnb, ntb, npair = 5, 4, 3

    L_end = k.newlabel('end')
    k('s_cmp_ge_u32 s2, %d' % NWG)
    k('s_cbranch_scc1 %s' % L_end)
    if STAMP:
        k('s_memtime s[84:85]')
        k('s_memrealtime s[94:95]')
    k('s_load_dwordx16 s[64:79], s[0:1], 0')
    k('s_load_dwordx4 s[80:83], s[0:1], 64')
    k('s_and_b32 s3, s2, %d' % (mtiles - 1))
    k('s_lshr_b32 s4, s2, 5')
    va = VAlloc(1)
    vl = va.get()
    k('v_and_b32 v%d, 63, v0' % vl)
    k('v_lshrrev_b32 v2, 6, v0')
    va.get()
    k('s_nop 0')
    k('v_readfirstlane_b32 s5, v2')
    k('s_lshl_b32 s56, s3, 6')
    k('s_mul_i32 s57, s4, %d' % TN)
    k('s_min_u32 s58, s5, %d' % rem)
    k('s_mul_i32 s59, s5, %d' % base)
    k('s_add_u32 s59, s59, s58')
    k('s_cmp_lt_u32 s5, %d' % rem)
    k('s_cselect_b32 s55, %d, %d' % (base + 1, base))
    ta = va.get()
    tb_ = va.get()
    vxd = va.get()
    vwd = va.get()
    k('v_lshlrev_b32 v%d, 4, v%d' % (vxd, vl))
    k('s_mul_i32 s48, s3, %d' % S)
    k('s_add_u32 s48, s48, s59')
    k('s_lshl_b32 s48, s48, 12')
    k('s_mul_i32 s49, s4, %d' % K)
    k('s_lshl_b32 s58, s59, 5')
    k('s_add_u32 s49, s49, s58')
    k('s_mul_i32 s49, s49, 160')
    k('s_mul_i32 s52, s5, %d' % WV)
    k('s_add_u32 s53, s52, %d' % WV)
    k('s_mov_b32 s50, s52')
    k('s_mov_b32 s51, s52')
    k('s_waitcnt lgkmcnt(0)')

    def srd_of(sd, src):
        if src[0] == 'ptr':
            mk_srd(k, sd, PTR(src[1]), 0, KSIZE[src[1]])
        else:
            mk_srd(k, sd, PTR('ws'), src[1], src[2])
    srd_of(8, xsrc)
    mk_srd(k, 12, PTR('ws'), wsrc, K * 1280)

    def dma_ops():
        ops = [['s_mov_b32 m0, s50', 's_nop 0', 'buffer_load_dwordx4 v%d, s[8:11], s48 offen lds' % vxd]]
        for j in range(1, 4):
            ops.append('buffer_load_dwordx4 v%d, s[8:11], s48 offen offset:%d lds' % (vxd, j * 1024))
        ops.append(['s_add_u32 m0, s50, %d' % XB, 's_nop 0', 'buffer_load_dwordx4 v%d, s[12:15], s49 offen lds' % vxd])
        for q in range(1, 4):
            ops.append('buffer_load_dwordx4 v%d, s[12:15], s49 offen offset:%d lds' % (vxd, q * 1024))
        ops.append(['s_add_u32 m0, s50, %d' % (XB + 4096), 's_add_u32 s54, s49, 4096',
                    'buffer_load_dwordx4 v%d, s[12:15], s54 offen lds' % vxd])
        ops.append(['s_add_u32 s48, s48, 4096', 's_add_u32 s49, s49, 5120',
                    's_add_u32 s50, s50, %d' % STAGE, 's_cmp_eq_u32 s50, s53', 's_cselect_b32 s50, s52, s50'])
        return ops

    assert base >= NB
    for s in range(NB):
        emit_list(k, dma_ops())

    srd_of(24, dst)
    srd_of(28, resid)
    mk_srd(k, 20, PTR('ws'), 0, 0x100000)
    vg = va.get()
    k('v_lshrrev_b32 v%d, 4, v%d' % (vg, vl))
    vres = va.get(npair * 4, 4)
    vra = va.get()
    vrb = va.get()
    k('s_lshl_b32 s58, s5, 4')
    k('s_add_u32 s58, s58, s56')
    k('v_and_b32 v%d, 15, v%d' % (vra, vl))
    k('v_add_u32 v%d, s58, v%d' % (vra, vra))
    k('v_mul_u32_u24 v%d, %d, v%d' % (vra, N * 2, vra))
    k('v_lshl_add_u32 v%d, v%d, 4, v%d' % (vra, vg, vra))
    k('s_lshl_b32 s58, s57, 1')
    k('v_add_u32 v%d, s58, v%d' % (vra, vra))
    k('v_lshlrev_b32 v%d, 3, v%d' % (vrb, vg))
    k('v_sub_u32 v%d, v%d, v%d' % (vrb, vra, vrb))
    k('buffer_load_dwordx4 %s, v%d, s[28:31], 0 offen' % (vr(vres, 4), vra))
    k('buffer_load_dwordx4 %s, v%d, s[28:31], 0 offen offset:64' % (vr(vres + 4, 4), vra))
    k('buffer_load_dwordx2 %s, v%d, s[28:31], 0 offen offset:128' % (vr(vres + 8, 2), vrb))
    NRES = 3

    vxr = va.get()
    vwr = [va.get() for _ in range(npair)]
    vxa = va.get()
    vwa = [va.get() for _ in range(npair)]
    k('v_and_b32 v%d, 15, v%d' % (ta, vl))
    k('v_lshrrev_b32 v%d, 2, v%d' % (tb_, ta))
    k('v_sub_u32 v%d, 0, v%d' % (tb_, tb_))
    k('v_xor_b32 v%d, v%d, v%d' % (tb_, tb_, vg))
    k('v_and_b32 v%d, 3, v%d' % (tb_, tb_))
    k('v_lshlrev_b32 v%d, 6, v%d' % (vxr, ta))
    k('v_lshl_add_u32 v%d, v%d, 4, v%d' % (vxr, tb_, vxr))
    vrr = va.get()
    k('v_bfe_u32 v%d, v%d, 2, 2' % (vrr, vl))
    for p in range(npair):
        k('v_lshl_add_u32 v%d, v%d, 3, v%d' % (ta, vg, vrr))
        k('v_mul_u32_u24 v%d, 160, v%d' % (ta, ta))
        k('v_and_b32 v%d, 3, v%d' % (tb_, vl))
        k('v_lshl_add_u32 v%d, v%d, %d, v%d' % (ta, tb_, 4 if 2 * p + 1 < nnb else 3, ta))
        k('v_add_u32 v%d, %d, v%d' % (vwr[p], XB + p * 64, ta))

    xf = [[va.get(4, 4) for _ in range(ntb)] for _ in range(2)]
    wf = [[va.get(4, 4) for _ in range(nnb)] for _ in range(2)]
    accb = va.get(80, 4)
    acc = lambda nb, tb: accb + (tb * nnb + nb) * 4
    for i in range(80):
        k('v_mov_b32 v%d, 0' % (accb + i))

    def read_ops(st):
        ops = ['ds_read_b128 %s, v%d offset:%d' % (vr(xf[st][tb], 4), vxa, tb * 1024) for tb in range(ntb)]
        for nb in range(nnb):
            p, b = nb // 2, nb % 2
            for i in range(2):
                ops.append('ds_read_b64_tr_b16 %s, v%d offset:%d' % (vr(wf[st][nb] + 2 * i, 2), vwa[p], i * 640 + 8 * b))
        return ops

    def addr_ops():
        ops = ['v_add_u32 v%d, s51, v%d' % (vxa, vxr)]
        ops += ['v_add_u32 v%d, s51, v%d' % (vwa[p], vwr[p]) for p in range(npair)]
        ops += ['s_add_u32 s51, s51, %d' % STAGE, 's_cmp_eq_u32 s51, s53', 's_cselect_b32 s51, s52, s51']
        return ops

    def mfma_ops(st):
        return ['v_mfma_f32_16x16x32_bf16 %s, %s, %s, %s' % (vr(acc(nb, tb), 4), vr(wf[st][nb], 4), vr(xf[st][tb], 4),
                                                             vr(acc(nb, tb), 4))
                for nb in range(nnb) for tb in range(ntb)]

    k('s_waitcnt vmcnt(%d)' % ((NB - 1) * DPW + NRES))
    emit_list(k, addr_ops())
    emit_list(k, read_ops(0))
    k('s_waitcnt lgkmcnt(0)')
    if STAMP:
        k('s_memtime s[86:87]')
    first = [True]

    def step(st):
        Lt = k.newlabel('tail')
        Lj = k.newlabel('join')
        k('s_cmp_le_u32 s55, %d' % NB)
        k('s_cbranch_scc1 %s' % Lt)
        k('s_waitcnt vmcnt(%d)' % ((NB - 2) * DPW))
        emit_list(k, addr_ops())
        mem = ([] if os.environ.get('NOREAD') else read_ops(1 - st)) + ([] if os.environ.get('NODMA') else dma_ops()) + ['s_nop 0', 's_nop 0']
        emit_list(k, mem[:2])
        emit_list(k, interleave(mfma_ops(st), mem[2:]))
        k('s_branch %s' % Lj)
        k.label(Lt)
        k('s_waitcnt vmcnt(0)')
        emit_list(k, addr_ops())
        mem = read_ops(1 - st)
        emit_list(k, mem[:2])
        emit_list(k, interleave(mfma_ops(st), mem[2:]))
        k.label(Lj)
        k('s_waitcnt lgkmcnt(0)')
        k('s_sub_u32 s55, s55, 1')
        k('s_cmp_eq_u32 s55, 1')

    Lloop = k.newlabel('loop')
    LlastB = k.newlabel('lastB')
    Ldone = k.newlabel('done')
    k.label(Lloop)
    step(0)
    k('s_cbranch_scc1 %s' % LlastB)
    step(1)
    k('s_cbranch_scc0 %s' % Lloop)
    emit_list(k, mfma_ops(0))
    k('s_branch %s' % Ldone)
    k.label(LlastB)
    emit_list(k, mfma_ops(1))
    k.label(Ldone)
    if STAMP:
        k('s_memtime s[88:89]')
    k('s_nop 7')
    k('s_barrier')
    vo16 = va.get()
    k('v_lshlrev_b32 v%d, 4, v%d' % (vo16, vl))
    k('s_mul_i32 s58, s5, 20480')
    k('v_add_u32 v%d, s58, v%d' % (ta, vo16))
    for tb in range(ntb):
        for nb in range(nnb):
            k('ds_write_b128 v%d, %s offset:%d' % (ta, vr(acc(nb, tb), 4), (tb * nnb + nb) * 1024))
    k('s_waitcnt lgkmcnt(0)')
    k('s_barrier')
    k('s_mul_i32 s58, s5, 5120')
    k('v_add_u32 v%d, s58, v%d' % (ta, vo16))
    red = xf[0][0]
    k('v_add_u32 v%d, 40960, v%d' % (tb_, ta))
    for w in range(4):
        for nb in range(nnb):
            dstr = accb + nb * 4 if w == 0 else red + ((w - 1) * nnb + nb) * 4
            k('ds_read_b128 %s, v%d offset:%d' % (vr(dstr, 4), ta if w < 2 else tb_, (w & 1) * 20480 + nb * 1024))
    k('s_waitcnt lgkmcnt(0)')
    for nb in range(nnb):
        for i in range(4):
            for w in range(3):
                k('v_add_f32 v%d, v%d, v%d' % (accb + nb * 4 + i, accb + nb * 4 + i, red + (w * nnb + nb) * 4 + i))
    t = accb + 24
    vs = accb + 32
    vx = accb + 36
    k('v_mov_b32 v%d, 0' % vs)
    k('v_mov_b32 v%d, 0' % (vs + 1))
    for p in range(npair):
        full = 2 * p + 1 < nnb
        res = vres + p * 4
        nbk = 2 if full else 1
        for b in range(nbk):
            a = accb + (2 * p + b) * 4
            for i in range(4):
                src = res + 2 * b + i // 2
                if i % 2 == 0:
                    k('v_lshlrev_b32 v%d, 16, v%d' % (vx, src))
                else:
                    k('v_and_b32 v%d, 0xffff0000, v%d' % (vx, src))
                k('v_add_f32 v%d, v%d, v%d' % (t + 4 * b + i, a + i, vx))
        for b in range(nbk):
            k('v_cvt_pk_bf16_f32 v%d, v%d, v%d' % (res + 2 * b, t + 4 * b, t + 4 * b + 1))
            k('v_cvt_pk_bf16_f32 v%d, v%d, v%d' % (res + 2 * b + 1, t + 4 * b + 2, t + 4 * b + 3))
        if full:
            k('buffer_store_dwordx4 %s, v%d, s[24:27], 0 offen offset:%d' % (vr(res, 4), vra, p * 64))
        else:
            k('buffer_store_dwordx2 %s, v%d, s[24:27], 0 offen offset:%d' % (vr(res, 2), vrb, p * 64))
        if want_stats:
            for i in range(2 * nbk):
                k('v_lshlrev_b32 v%d, 16, v%d' % (vx, res + i))
                k('v_and_b32 v%d, 0xffff0000, v%d' % (vx + 2, res + i))
                k('v_add_f32 v%d, v%d, v%d' % (vs, vs, vx))
                k('v_fmac_f32 v%d, v%d, v%d' % (vs + 1, vx, vx))
                k('v_add_f32 v%d, v%d, v%d' % (vs, vs, vx + 2))
                k('v_fmac_f32 v%d, v%d, v%d' % (vs + 1, vx + 2, vx + 2))
    if want_stats:
        for sh in (16, 32):
            k('v_xor_b32 v%d, %d, v%d' % (vx, sh, vl))
            k('v_lshlrev_b32 v%d, 2, v%d' % (vx, vx))
            k('ds_bpermute_b32 v%d, v%d, v%d' % (vx + 1, vx, vs))
            k('ds_bpermute_b32 v%d, v%d, v%d' % (vx + 2, vx, vs + 1))
            k('s_waitcnt lgkmcnt(0)')
            k('v_add_f32 v%d, v%d, v%d' % (vs, vs, vx + 1))
            k('v_add_f32 v%d, v%d, v%d' % (vs + 1, vs + 1, vx + 2))
        k('s_lshl_b32 s58, s5, 4')
        k('s_add_u32 s58, s58, s56')
        k('v_add_u32 v%d, s58, v%d' % (vx, vl))
        k('v_lshlrev_b32 v%d, 6, v%d' % (vx, vx))
        k('s_lshl_b32 s58, s4, 3')
        k('s_add_u32 s58, s58, 0x%x' % ST_OFF)
        k('v_add_u32 v%d, s58, v%d' % (vx, vx))
        L1 = k.newlabel('st')
        k('v_cmp_gt_u32 vcc, 16, v%d' % vl)
        k('s_and_saveexec_b64 s[60:61], vcc')
        k('s_cbranch_execz %s' % L1)
        k('buffer_store_dwordx2 %s, v%d, s[20:23], 0 offen' % (vr(vs, 2), vx))
        k.label(L1)
        k('s_mov_b64 exec, s[60:61]')
    if STAMP:
        k('s_waitcnt vmcnt(0)')
        k('s_memtime s[90:91]')
        k('s_memrealtime s[92:93]')
        k('s_waitcnt lgkmcnt(0)')
        Ls = k.newlabel('st')
        k('s_cmp_lg_u32 s2, %s' % STAMP)
        k('s_cbranch_scc1 %s' % Ls)
        k('s_cmp_lg_u32 s5, 0')
        k('s_cbranch_scc1 %s' % Ls)
        mk_srd(k, 8, PTR('dbg'), 0, 256)
        k('s_sub_u32 s92, s92, s94')
        k('s_add_u32 s92, s92, s84')
        for i in range(1, 5):
            k('s_sub_u32 s%d, s%d, s84' % (84 + 2 * i, 84 + 2 * i))
            k('v_mov_b32 v1, s%d' % (84 + 2 * i))
            k('v_mov_b32 v2, 0')
            k('buffer_store_dword v1, v2, s[8:11], 0 offen offset:%d' % (4 * i))
        k.label(Ls)
    k.label(L_end)
    k('s_endpgm')
    return k, va.n, 0, LDS, NWG
```

```python
from common import *

NWG_PREP = 168 + 512
E0 = 168 + 512 + 256 + 128


def prep_kernel():
    k = Kern('prep_kernel')
    L_end = k.newlabel('end')
    L_b = k.newlabel('roleb')
    L_c = k.newlabel('rolec')
    L_d = k.newlabel('roled')
    k('s_cmp_ge_u32 s2, %d' % NWG_PREP)
    k('s_cbranch_scc1 %s' % L_end)
    load_ptr(k, 20, 'ws')
    k('s_cmp_ge_u32 s2, 168')
    k('s_cbranch_scc1 %s' % L_b)
    L_g = k.newlabel('ag')
    L_u = k.newlabel('au')
    L_go = k.newlabel('ago')
    k('s_cmp_ge_u32 s2, 60')
    k('s_cbranch_scc1 %s' % L_g)
    load_ptr(k, 4, 'A_wqkv')
    k('s_mov_b32 s24, 3840')
    k('s_mov_b32 s25, %d' % KSIZE['A_wqkv'])
    k('s_mov_b32 s26, s2')
    k('s_mov_b32 s27, 0')
    k('s_branch %s' % L_go)
    k.label(L_g)
    k('s_cmp_ge_u32 s2, 114')
    k('s_cbranch_scc1 %s' % L_u)
    load_ptr(k, 4, 'w_gate')
    k('s_mov_b32 s24, 3456')
    k('s_mov_b32 s25, %d' % KSIZE['w_gate'])
    k('s_sub_u32 s26, s2, 60')
    k('s_mov_b32 s27, 1920')
    k('s_branch %s' % L_go)
    k.label(L_u)
    load_ptr(k, 4, 'w_up')
    k('s_mov_b32 s24, 3456')
    k('s_mov_b32 s25, %d' % KSIZE['w_up'])
    k('s_sub_u32 s26, s2, 114')
    k('s_mov_b32 s27, %d' % (1920 + 1728))
    k.label(L_go)
    k('s_waitcnt lgkmcnt(0)')
    k('s_mov_b32 s8, s4')
    k('s_and_b32 s9, s5, 0xffff')
    k('s_mov_b32 s10, s25')
    k('s_mov_b32 s11, 0x20000')
    mk_srd(k, 12, 20, CS_OFF, 5376 * 4)
    k('v_and_b32 v1, 15, v0')
    k('v_lshrrev_b32 v2, 4, v0')
    k('s_mul_i32 s28, s24, 40')
    k('v_mul_lo_u32 v3, v2, s28')
    k('s_lshl_b32 s29, s26, 6')
    k('v_lshl_add_u32 v3, v1, 2, v3')
    k('v_add_u32 v3, s29, v3')
    k('s_mov_b32 s30, 0')
    for i in range(40):
        k('buffer_load_dword v%d, v3, s[8:11], s30 offen' % (8 + i))
        k('s_add_u32 s30, s30, s24')
    k('v_mov_b32 v4, 0')
    k('v_mov_b32 v5, 0')
    for i in range(40):
        k('s_waitcnt vmcnt(%d)' % (39 - i))
        k('v_lshlrev_b32 v6, 16, v%d' % (8 + i))
        k('v_and_b32 v7, 0xffff0000, v%d' % (8 + i))
        k('v_add_f32 v4, v4, v6')
        k('v_add_f32 v5, v5, v7')
    k('v_lshlrev_b32 v6, 3, v0')
    k('ds_write_b64 v6, v[4:5]')
    k('s_waitcnt lgkmcnt(0)')
    k('s_barrier')
    L_a_done = k.newlabel('adone')
    k('v_cmp_gt_u32 vcc, 32, v0')
    k('s_and_saveexec_b64 s[32:33], vcc')
    k('s_cbranch_execz %s' % L_a_done)
    k('v_lshlrev_b32 v6, 2, v0')
    for ty in range(16):
        k('ds_read_b32 v%d, v6 offset:%d' % (8 + ty, ty * 128))
    k('s_waitcnt lgkmcnt(0)')
    for ty in range(1, 16):
        k('v_add_f32 v8, v8, v%d' % (8 + ty))
    k('s_lshl_b32 s29, s26, 5')
    k('s_add_u32 s29, s29, s27')
    k('s_lshl_b32 s29, s29, 2')
    k('v_add_u32 v6, s29, v6')
    k('buffer_store_dword v8, v6, s[12:15], 0 offen')
    k.label(L_a_done)
    k('s_mov_b64 exec, s[32:33]')
    k('s_branch %s' % L_end)

    k.label(L_b)
    k('s_cmp_ge_u32 s2, %d' % (168 + 512))
    k('s_cbranch_scc1 %s' % L_c)
    load_ptr(k, 4, 'A_x')
    k('s_waitcnt lgkmcnt(0)')
    mk_srd(k, 8, 4, 0, KSIZE['A_x'])
    mk_srd(k, 12, 20, ST_OFF, 2048 * 64)
    k('s_sub_u32 s24, s2, 168')
    k('s_lshl_b32 s24, s24, 2')
    k('v_lshrrev_b32 v1, 6, v0')
    k('v_and_b32 v2, 63, v0')
    k('v_add_u32 v1, s24, v1')
    k('v_mul_u32_u24 v3, 1280, v1')
    k('v_lshl_add_u32 v4, v2, 3, v3')
    k('v_lshl_add_u32 v5, v2, 2, v3')
    k('buffer_load_dwordx2 v[8:9], v4, s[8:11], 0 offen')
    k('buffer_load_dwordx2 v[10:11], v4, s[8:11], 0 offen offset:512')
    k('buffer_load_dword v12, v5, s[8:11], 0 offen offset:1024')
    k('v_mov_b32 v14, 0')
    k('v_mov_b32 v15, 0')
    k('s_waitcnt vmcnt(0)')
    for i in range(5):
        k('v_lshlrev_b32 v6, 16, v%d' % (8 + i))
        k('v_and_b32 v7, 0xffff0000, v%d' % (8 + i))
        k('v_add_f32 v14, v14, v6')
        k('v_fmac_f32 v15, v6, v6')
        k('v_add_f32 v14, v14, v7')
        k('v_fmac_f32 v15, v7, v7')
    for sh in (1, 2, 4, 8, 16, 32):
        k('v_xor_b32 v6, %d, v2' % sh)
        k('v_lshlrev_b32 v6, 2, v6')
        k('ds_bpermute_b32 v16, v6, v14')
        k('ds_bpermute_b32 v17, v6, v15')
        k('s_waitcnt lgkmcnt(0)')
        k('v_add_f32 v14, v14, v16')
        k('v_add_f32 v15, v15, v17')
    k('v_mov_b32 v16, 0')
    k('v_cmp_eq_u32 vcc, 0, v2')
    k('s_nop 1')
    k('v_cndmask_b32 v16, v16, v14, vcc')
    k('v_cmp_eq_u32 vcc, 1, v2')
    k('s_nop 1')
    k('v_cndmask_b32 v16, v16, v15, vcc')
    k('v_lshlrev_b32 v6, 6, v1')
    k('v_lshl_add_u32 v6, v2, 2, v6')
    L_b_done = k.newlabel('bdone')
    k('v_cmp_gt_u32 vcc, 16, v2')
    k('s_and_saveexec_b64 s[32:33], vcc')
    k('s_cbranch_execz %s' % L_b_done)
    k('buffer_store_dword v16, v6, s[12:15], 0 offen')
    k.label(L_b_done)
    k('s_mov_b64 exec, s[32:33]')
    k('s_branch %s' % L_end)

    k.label(L_c)
    k('s_cmp_ge_u32 s2, %d' % (168 + 512 + 256))
    k('s_cbranch_scc1 %s' % L_d)
    k('s_waitcnt lgkmcnt(0)')
    mk_srd(k, 12, 20, QF_OFF, 8 << 20)
    k('s_sub_u32 s24, s2, %d' % (168 + 512))
    k('s_lshl_b32 s24, s24, 4')
    k('v_lshrrev_b32 v1, 4, v0')
    k('v_add_u32 v1, s24, v1')
    k('v_lshlrev_b32 v1, 11, v1')
    k('v_and_b32 v2, 15, v0')
    k('v_lshl_add_u32 v1, v2, 6, v1')
    for i in range(4):
        k('v_mov_b32 v%d, 0' % (4 + i))
    for i in range(4):
        k('buffer_store_dwordx4 v[4:7], v1, s[12:15], 0 offen offset:%d' % (1024 + i * 16))
    k('s_branch %s' % L_end)

    k.label(L_d)
    L_e = k.newlabel('rolee')
    k('s_cmp_ge_u32 s2, %d' % E0)
    k('s_cbranch_scc1 %s' % L_e)
    k('s_waitcnt lgkmcnt(0)')
    mk_srd(k, 12, 20, VF_OFF, 4 << 20)
    k('s_sub_u32 s24, s2, %d' % (168 + 512 + 256))
    k('s_lshl_b32 s24, s24, 5')
    k('v_lshrrev_b32 v1, 3, v0')
    k('v_add_u32 v1, s24, v1')
    k('v_lshlrev_b32 v1, 10, v1')
    k('v_and_b32 v2, 3, v0')
    k('v_mul_u32_u24 v3, 48, v2')
    k('v_add_u32 v1, v1, v3')
    k('v_and_b32 v3, 4, v0')
    k('v_lshl_add_u32 v1, v3, 7, v1')
    k('v_mov_b32 v8, 0x3f803f80')
    k('v_cmp_eq_u32 vcc, 0, v2')
    k('v_mov_b32 v4, 0')
    k('s_nop 1')
    k('v_cndmask_b32 v8, v4, v8, vcc')
    k('v_mov_b32 v9, v8')
    k('v_mov_b32 v10, v8')
    k('v_mov_b32 v11, v8')
    k('v_mov_b32 v5, 0')
    k('v_mov_b32 v6, 0')
    k('v_mov_b32 v7, 0')
    k('buffer_store_dwordx4 v[8:11], v1, s[12:15], 0 offen offset:320')
    k('buffer_store_dwordx4 v[4:7], v1, s[12:15], 0 offen offset:336')
    k('buffer_store_dwordx4 v[4:7], v1, s[12:15], 0 offen offset:352')
    k('s_branch %s' % L_end)

    k.label(L_e)
    L_e2 = k.newlabel('rolee2')
    L_e3 = k.newlabel('rolee3')
    k('s_sub_u32 s24, s2, %d' % E0)
    k('s_cmp_ge_u32 s24, 200')
    k('s_cbranch_scc1 %s' % L_e2)
    load_ptr(k, 4, 'A_wo')
    k('s_mov_b32 s25, %d' % KSIZE['A_wo'])
    k('s_mov_b32 s26, 0x%x' % WOP_OFF)
    k('s_mov_b32 s27, 640')
    k('s_branch %s' % L_e3)
    k.label(L_e2)
    load_ptr(k, 4, 'w_down')
    k('s_sub_u32 s24, s24, 200')
    k('s_mov_b32 s25, %d' % KSIZE['w_down'])
    k('s_mov_b32 s26, 0x%x' % WDP_OFF)
    k('s_mov_b32 s27, 1728')
    k.label(L_e3)
    k('s_waitcnt lgkmcnt(0)')
    k('s_mov_b32 s8, s4')
    k('s_and_b32 s9, s5, 0xffff')
    k('s_mov_b32 s10, s25')
    k('s_mov_b32 s11, 0x20000')
    k('s_add_u32 s12, s20, s26')
    k('s_addc_u32 s13, s21, 0')
    k('s_and_b32 s13, s13, 0xffff')
    k('s_mov_b32 s14, s25')
    k('s_mov_b32 s15, 0x20000')
    k('s_lshl_b32 s24, s24, 8')
    k('v_add_u32 v1, s24, v0')
    k('v_lshlrev_b32 v2, 4, v1')
    k('buffer_load_dwordx4 v[8:11], v2, s[8:11], 0 offen')
    k('s_mov_b32 s28, 52429')
    k('v_mul_lo_u32 v3, v1, s28')
    k('v_mul_hi_u32 v4, v1, s28')
    k('v_lshrrev_b32 v3, 22, v3')
    k('v_lshl_or_b32 v3, v4, 10, v3')
    k('v_mul_u32_u24 v4, 80, v3')
    k('v_sub_u32 v4, v1, v4')
    k('s_movk_i32 s28, 6554')
    k('v_mul_lo_u32 v5, v4, s28')
    k('v_lshrrev_b32 v5, 16, v5')
    k('v_mul_u32_u24 v6, 10, v5')
    k('v_sub_u32 v6, v4, v6')
    k('v_mul_lo_u32 v5, v5, s27')
    k('v_add_u32 v5, v5, v3')
    k('v_mul_u32_u24 v5, 160, v5')
    k('v_lshl_add_u32 v5, v6, 4, v5')
    k('s_waitcnt vmcnt(0)')
    k('buffer_store_dwordx4 v[8:11], v5, s[12:15], 0 offen')
    k.label(L_end)
    k('s_endpgm')
    return k, 48, 0
```

```python
import sys
import os
sys.path.insert(0, os.path.dirname(os.path.abspath(__file__)))
from common import *
from prep import prep_kernel, NWG_PREP
from gemm import *
from attn import attn_kernel
from gemm32 import *
from gemmsk import gemmsk_kernel

XSZ = S_TOK * D * 2


def build():
    kerns = []
    launches = []

    k, nv, na = prep_kernel()
    kerns.append((k, nv, na))
    L_prep = (k.name, NWG_PREP, 256, 2048)

    def qkv(name, xsrc):
        k, nv, na, lds, nwg = gemm32_kernel(
            name, K=640, NB=4, mtiles=16, ntiles=15, xsrc=xsrc, XS=1280,
            wsrcs=['A_wqkv'], WS=3840, N=1920, epi=epi32_qkv, cs_base=(0,))
        kerns.append((k, nv, na))
        return (k.name, nwg, 512, lds)

    def oproj(name, resid, dst):
        k, nv, na, lds, nwg = gemmsk_kernel(name, K=640, NB=4, xsrc=('ws', O_OFF, XSZ), XS=1280, wsrc=WOP_OFF,
                                            resid=resid, dst=dst)
        kerns.append((k, nv, na))
        return (k.name, nwg, 256, lds)

    def geglu(name, xsrc):
        k, nv, na, lds, nwg = gemm32_kernel(
            name, K=640, NB=3, mtiles=16, ntiles=14, xsrc=xsrc, XS=1280,
            wsrcs=['w_gate', 'w_up'], WS=3456, N=1728, epi=epi32_geglu, cs_base=(1920, 1920 + 1728),
            dst=('ws', H_OFF, S_TOK * DF * 2), proto=2, xcdmap=True)
        kerns.append((k, nv, na))
        return (k.name, nwg, 512, lds)

    def down(name, resid, dst, want_stats=True):
        k, nv, na, lds, nwg = gemmsk_kernel(name, K=1728, NB=4, xsrc=('ws', H_OFF, S_TOK * DF * 2), XS=3456,
                                            wsrc=WDP_OFF, resid=resid, dst=dst, want_stats=want_stats)
        kerns.append((k, nv, na))
        return (k.name, nwg, 256, lds)

    k, nv, na, lds, nwg = attn_kernel()
    kerns.append((k, nv, na))
    L_attn = (k.name, nwg, 512, lds)

    X0 = ('ptr', 'A_x')
    X1 = ('ws', X1_OFF, XSZ)
    X2 = ('ws', X2_OFF, XSZ)
    OUT = ('ptr', 'out')
    L_g = geglu('geglu_kernel', X1)
    launches = [
        L_prep,
        qkv('qkv0_kernel', X0), L_attn, oproj('oproj0_kernel', X0, X1), L_g, down('down0_kernel', X1, X2),
        qkv('qkv1_kernel', X2), L_attn, oproj('oproj1_kernel', X2, X1), L_g,
        down('down1_kernel', X1, OUT, want_stats=False),
    ]
    ref = open(os.path.join(os.path.dirname(os.path.abspath(__file__)), '..', 'cdna_kernels',
                            'interleave_layers__mha_block__glu_gated_geglu__prompt.s.ref')).read()
    head = []
    for ln in ref.split('\n'):
        if ln.startswith('; @launch'):
            break
        head.append(ln)
    out = head[:]
    for (n, g, b, lds) in launches:
        out.append('; @launch kernel=%s grid=(%d,1,1) block=(%d,1,1) lds=%d' % (n, g, b, lds))
    out.append('.amdgcn_target "amdgcn-amd-amdhsa--gfx950"')
    out.append('.text')
    descs = []
    for (k, nv, na) in kerns:
        body, desc = finish(k, nv, na)
        out.append(body)
        descs.append(desc)
        print('%-16s vgpr %3d agpr %3d lines %d' % (k.name, nv, na, len(k.lines)), file=sys.stderr)
    out.append('.section .rodata,"a"')
    for d in descs:
        out.append('.p2align 6')
        out.append(d)
    txt = '\n'.join(out) + '\n'
    fl = os.environ.get('STFLAG')
    if fl:
        import re
        txt = re.sub(r'(buffer_store_dword\w* [^\n]*)', lambda m: m.group(1) + ' ' + fl, txt)
    return txt


if __name__ == '__main__':
    dst = sys.argv[1] if len(sys.argv) > 1 else os.path.join(
        os.path.dirname(os.path.abspath(__file__)), '..', 'cdna_kernels',
        'interleave_layers__mha_block__glu_gated_geglu__prompt.s')
    open(dst, 'w').write(build())
```

```python
from common import *
from gemm import PTR
import os
STAMP = os.environ.get('STAMP')

NWG_ATTN = 256
CH = 8
NCH = 64 // CH
CHB = CH * 4096
NBUF = 3
THR = '0x41000000'


def attn_kernel():
    k = Kern('attn_kernel')
    L_end = k.newlabel('end')
    k('s_cmp_ge_u32 s2, %d' % NWG_ATTN)
    k('s_cbranch_scc1 %s' % L_end)
    if STAMP:
        k('s_memtime s[84:85]')
        k('s_memrealtime s[94:95]')
    k('s_load_dwordx4 s[80:83], s[0:1], 64')
    k('s_and_b32 s3, s2, 31')
    k('s_lshr_b32 s4, s2, 5')
    va = VAlloc(1)
    vl = va.get()
    k('v_and_b32 v%d, 63, v0' % vl)
    k('v_lshrrev_b32 v2, 6, v0')
    va.get()
    k('s_nop 0')
    k('v_readfirstlane_b32 s5, v2')
    k('s_waitcnt lgkmcnt(0)')
    mk_srd(k, 8, PTR('ws'), QF_OFF, 12 << 20)
    mk_srd(k, 12, PTR('ws'), O_OFF, S_TOK * D * 2)
    vo16 = va.get()
    k('v_lshlrev_b32 v%d, 4, v%d' % (vo16, vl))
    k('s_lshl_b32 s20, s3, 17')
    q = va.get(8, 4)
    k('s_lshl_b32 s21, s4, 3')
    k('s_add_u32 s21, s21, s5')
    k('s_lshl_b32 s22, s21, 11')
    k('s_add_u32 s22, s22, s20')
    k('buffer_load_dwordx4 %s, v%d, s[8:11], s22 offen' % (vr(q, 4), vo16))
    k('buffer_load_dwordx4 %s, v%d, s[8:11], s22 offen offset:1024' % (vr(q + 4, 4), vo16))
    k('s_lshl_b32 s23, s5, 11')
    k('s_add_u32 s24, s20, s23')
    k('s_add_u32 s25, s24, 0x800000')
    k('s_add_u32 s24, s24, 0x400000')
    k('s_mov_b32 s26, 0')

    def dma():
        k('s_add_u32 m0, s26, s23')
        k('s_nop 0')
        k('buffer_load_dwordx4 v%d, s[8:11], s24 offen lds' % vo16)
        k('buffer_load_dwordx4 v%d, s[8:11], s24 offen offset:1024 lds' % vo16)
        k('s_add_u32 m0, m0, %d' % (CH * 2048))
        k('s_nop 0')
        k('buffer_load_dwordx4 v%d, s[8:11], s25 offen lds' % vo16)
        k('buffer_load_dwordx4 v%d, s[8:11], s25 offen offset:1024 lds' % vo16)
        k('s_add_u32 s24, s24, %d' % (CH * 2048))
        k('s_add_u32 s25, s25, %d' % (CH * 2048))
        k('s_add_u32 s26, s26, %d' % CHB)
        k('s_cmp_eq_u32 s26, %d' % (NBUF * CHB))
        k('s_cselect_b32 s26, 0, s26')

    mk_srd(k, 16, PTR('ws'), KM_OFF, 320 * 4)
    km = va.get(6)
    k('v_lshlrev_b32 v%d, 2, v%d' % (km + 5, vl))
    for i in range(5):
        k('buffer_load_dword v%d, v%d, s[16:19], 0 offen offset:%d' % (km + i, km + 5, 256 * i))
    dma()
    dma()
    kfs = [va.get(8, 4), va.get(8, 4)]
    vfs = [va.get(8, 4), va.get(8, 4)]
    s_ = [va.get(16, 4), va.get(16, 4)]
    p_ = va.get(8, 4)
    o_ = va.get(16, 4)
    nm = va.get(16, 4)
    tm = va.get(6)
    vcur = va.get()
    vnxt = va.get()
    c100 = va.get()
    k('v_mov_b32 v%d, 0x42c80000' % c100)
    for i in range(16):
        k('v_mov_b32 v%d, 0' % (o_ + i))
    k('s_mov_b32 s27, 0')
    k('s_mov_b32 s28, %d' % CHB)
    k('v_mov_b32 v%d, v%d' % (vcur, vo16))
    k('v_add_u32 v%d, s28, v%d' % (vnxt, vo16))

    def rd_k(tile_in_chunk):
        kf = kfs[tile_in_chunk & 1]
        if tile_in_chunk < CH:
            a, off = vcur, tile_in_chunk * 2048
        else:
            a, off = vnxt, (tile_in_chunk - CH) * 2048
        return ['ds_read_b128 %s, v%d offset:%d' % (vr(kf, 4), a, off),
                'ds_read_b128 %s, v%d offset:%d' % (vr(kf + 4, 4), a, off + 1024)]

    def rd_v(tile_in_chunk):
        off = CH * 2048 + tile_in_chunk * 2048
        vf = vfs[tile_in_chunk & 1]
        return ['ds_read_b128 %s, v%d offset:%d' % (vr(vf, 4), vcur, off),
                'ds_read_b128 %s, v%d offset:%d' % (vr(vf + 4, 4), vcur, off + 1024)]

    def mf_s(dst, cinit, par):
        kf = kfs[par]
        return ['v_mfma_f32_32x32x16_bf16 %s, %s, %s, %s' % (vr(dst, 16), vr(kf, 4), vr(q, 4), cinit),
                'v_mfma_f32_32x32x16_bf16 %s, %s, %s, %s' % (vr(dst, 16), vr(kf + 4, 4), vr(q + 4, 4), vr(dst, 16))]

    def mf_pv(par):
        vf = vfs[par]
        return ['v_mfma_f32_32x32x16_bf16 %s, %s, %s, %s' % (vr(o_, 16), vr(vf, 4), vr(p_, 4), vr(o_, 16)),
                'v_mfma_f32_32x32x16_bf16 %s, %s, %s, %s' % (vr(o_, 16), vr(vf + 4, 4), vr(p_ + 4, 4), vr(o_, 16))]

    def max_ops(s):
        ops = []
        for i in range(5):
            ops.append('v_max3_f32 v%d, v%d, v%d, v%d' % (tm + i, s + 3 * i, s + 3 * i + 1, s + 3 * i + 2))
        ops.append('v_max3_f32 v%d, v%d, v%d, v%d' % (tm, tm, tm + 1, tm + 2))
        ops.append('v_max3_f32 v%d, v%d, v%d, v%d' % (tm + 3, tm + 3, tm + 4, s + 15))
        ops.append('v_max_f32 v%d, v%d, v%d' % (tm, tm, tm + 3))
        return ops

    def rowmax():
        k('v_mov_b32 v%d, v%d' % (tm + 1, tm))
        k('s_nop 1')
        k('v_permlane32_swap_b32 v%d, v%d' % (tm, tm + 1))
        k('v_max_f32 v%d, v%d, v%d' % (tm, tm, tm + 1))

    def exp_ops(s):
        ops = ['v_exp_f32 v%d, v%d' % (s + i, s + i) for i in range(16)]
        return ops

    def cvt_ops(s):
        return ['v_cvt_pk_bf16_f32 v%d, v%d, v%d' % (p_ + i, s + 2 * i, s + 2 * i + 1) for i in range(8)]

    k('s_waitcnt vmcnt(8)')
    k('v_max3_f32 v%d, v%d, v%d, v%d' % (km, km, km + 1, km + 2))
    k('v_max3_f32 v%d, v%d, v%d, v%d' % (km, km, km + 3, km + 4))
    for sh in (1, 2, 4, 8, 16, 32):
        k('v_xor_b32 v%d, %d, v%d' % (km + 1, sh, vl))
        k('v_lshlrev_b32 v%d, 2, v%d' % (km + 1, km + 1))
        k('ds_bpermute_b32 v%d, v%d, v%d' % (km + 2, km + 1, km))
        k('s_waitcnt lgkmcnt(0)')
        k('v_max_f32 v%d, v%d, v%d' % (km, km, km + 2))
    k('v_mov_b32 v%d, 0' % (km + 1))
    for i in range(8):
        k('v_lshlrev_b32 v%d, 16, v%d' % (km + 2, q + i))
        k('v_and_b32 v%d, 0xffff0000, v%d' % (km + 3, q + i))
        k('v_add_f32 v%d, v%d, abs(v%d)' % (km + 1, km + 1, km + 2))
        k('v_add_f32 v%d, v%d, abs(v%d)' % (km + 1, km + 1, km + 3))
    k('v_mov_b32 v%d, v%d' % (km + 2, km + 1))
    k('s_nop 1')
    k('v_permlane32_swap_b32 v%d, v%d' % (km + 1, km + 2))
    k('v_add_f32 v%d, v%d, v%d' % (km + 1, km + 1, km + 2))
    k('v_mul_f32 v%d, v%d, v%d' % (km, km, km + 1))
    k('v_mul_f32 v%d, 0x3f828f5c, v%d' % (km, km))
    k('s_waitcnt vmcnt(4)')
    k('s_barrier')
    emit_list(k, rd_k(0))
    k('s_waitcnt lgkmcnt(0)')
    emit_list(k, mf_s(s_[0], '0', 0))
    emit_list(k, rd_k(1))
    k('s_nop 7')
    k('s_nop 7')
    emit_list(k, max_ops(s_[0]))
    rowmax()
    for i in range(16):
        k('v_sub_f32 v%d, 0, v%d' % (nm + i, tm))
    for i in range(16):
        k('v_sub_f32 v%d, v%d, v%d' % (s_[0] + i, s_[0] + i, tm))
    k('v_sub_f32 v%d, v%d, v%d' % (km, km, tm))
    k('v_cmp_nle_f32 vcc, v%d, v%d' % (km, c100))
    k('s_waitcnt lgkmcnt(0)')
    k('s_mov_b32 s29, %d' % NCH)
    slow = []
    L_generic = k.newlabel('generic')
    L_fin = k.newlabel('fin')
    INIT = k.newlabel('INIT')
    k.label(INIT)
    if STAMP:
        k('s_memtime s[86:87]')
    k('s_cbranch_vccnz %s' % L_generic)

    def chunk_loop(fast):
        L_loop = k.newlabel('chunk')
        k.label(L_loop)
        k('s_waitcnt vmcnt(0)')
        k('s_barrier')
        L_nodma = k.newlabel('nodma')
        k('s_cmp_le_u32 s29, 2')
        k('s_cbranch_scc1 %s' % L_nodma)
        dma()
        k.label(L_nodma)
        for i in range(CH):
            cur, nxt = s_[i & 1], s_[1 - (i & 1)]
            pv = mf_pv((i + 1) & 1)
            sm = mf_s(nxt, vr(nm, 16), (i + 1) & 1)
            emit_list(k, rd_k(i + 2))
            emit_list(k, rd_v(i))
            if fast:
                ex = exp_ops(cur)
                k(pv[0])
                emit_list(k, ex[0:4])
                k(pv[1])
                emit_list(k, ex[4:8])
                k(sm[0])
                emit_list(k, ex[8:12])
                k(sm[1])
                emit_list(k, ex[12:16])
                k('s_nop 0')
                emit_list(k, cvt_ops(cur))
                k('s_waitcnt lgkmcnt(0)')
                k('s_nop 0')
                continue
            L_slow = k.newlabel('slow')
            L_back = k.newlabel('back')
            mx = max_ops(cur)
            k(pv[0])
            emit_list(k, mx[:4])
            k(pv[1])
            emit_list(k, mx[4:])
            k(sm[0])
            k('v_cmp_lt_f32 vcc, %s, v%d' % (THR, tm))
            k(sm[1])
            k('s_nop 4')
            k('s_cbranch_vccnz %s' % L_slow)
            k.label(L_back)
            emit_list(k, exp_ops(cur))
            k('s_nop 0')
            emit_list(k, cvt_ops(cur))
            k('s_waitcnt lgkmcnt(0)')
            k('s_nop 0')
            slow.append((L_slow, L_back, cur, nxt))
        k('s_mov_b32 s27, s28')
        k('s_add_u32 s28, s28, %d' % CHB)
        k('s_cmp_eq_u32 s28, %d' % (NBUF * CHB))
        k('s_cselect_b32 s28, 0, s28')
        k('v_add_u32 v%d, s27, v%d' % (vcur, vo16))
        k('v_add_u32 v%d, s28, v%d' % (vnxt, vo16))
        k('s_sub_u32 s29, s29, 1')
        k('s_cmp_lg_u32 s29, 0')
        k('s_cbranch_scc1 %s' % L_loop)

    chunk_loop(True)
    k('s_branch %s' % L_fin)
    k.label(L_generic)
    chunk_loop(False)
    k.label(L_fin)
    if STAMP:
        k('s_memtime s[88:89]')
    emit_list(k, mf_pv(1))
    k('s_nop 7')
    k('s_nop 7')
    k('v_mov_b32 v%d, v%d' % (tm, o_ + 8))
    k('v_mov_b32 v%d, v%d' % (tm + 1, o_ + 8))
    k('s_nop 1')
    k('v_permlane32_swap_b32 v%d, v%d' % (tm, tm + 1))
    k('v_rcp_f32 v%d, v%d' % (tm + 1, tm + 1))
    k('s_nop 0')
    for i in range(12):
        k('v_mul_f32 v%d, v%d, v%d' % (o_ + i, o_ + i, tm + 1))
    for g in range(3):
        k('v_cvt_pk_bf16_f32 v%d, v%d, v%d' % (p_ + 2 * g, o_ + 4 * g, o_ + 4 * g + 1))
        k('v_cvt_pk_bf16_f32 v%d, v%d, v%d' % (p_ + 2 * g + 1, o_ + 4 * g + 2, o_ + 4 * g + 3))
    k('s_lshr_b32 s22, s21, 1')
    k('s_mul_i32 s22, s22, 20')
    k('s_lshl_b32 s22, s22, 12')
    k('s_and_b32 s30, s21, 1')
    k('s_lshl_b32 s30, s30, 11')
    k('s_add_u32 s22, s22, s30')
    k('v_and_b32 v%d, 31, v%d' % (tm, vl))
    k('v_bfe_u32 v%d, v%d, 2, 2' % (tm + 2, tm))
    k('v_sub_u32 v%d, 0, v%d' % (tm + 2, tm + 2))
    k('v_lshlrev_b32 v%d, 6, v%d' % (tm, tm))
    k('v_add_u32 v%d, s22, v%d' % (tm, tm))
    k('v_lshrrev_b32 v%d, 5, v%d' % (tm + 1, vl))
    k('s_mul_i32 s22, s3, 20')
    for g in range(3):
        k('v_lshl_add_u32 v%d, v%d, 2, s22' % (tm + 3, tm + 1))
        if g:
            k('v_add_u32 v%d, %d, v%d' % (tm + 3, 8 * g, tm + 3))
        k('v_lshrrev_b32 v%d, 5, v%d' % (tm + 4, tm + 3))
        k('v_lshl_add_u32 v%d, v%d, 12, v%d' % (tm + 4, tm + 4, tm))
        k('v_lshrrev_b32 v%d, 3, v%d' % (tm + 5, tm + 3))
        k('v_xor_b32 v%d, v%d, v%d' % (tm + 5, tm + 5, tm + 2))
        k('v_and_b32 v%d, 3, v%d' % (tm + 5, tm + 5))
        k('v_lshl_add_u32 v%d, v%d, 4, v%d' % (tm + 4, tm + 5, tm + 4))
        k('v_bfe_u32 v%d, v%d, 2, 1' % (tm + 5, tm + 3))
        k('v_lshl_add_u32 v%d, v%d, 3, v%d' % (tm + 4, tm + 5, tm + 4))
        if g == 2:
            k('v_mov_b32 v%d, 0x7ffffff0' % (tm + 5))
            k('v_cmp_gt_u32 vcc, 32, v%d' % vl)
            k('s_nop 1')
            k('v_cndmask_b32 v%d, v%d, v%d, vcc' % (tm + 4, tm + 5, tm + 4))
        k('buffer_store_dwordx2 %s, v%d, s[12:15], 0 offen' % (vr(p_ + 2 * g, 2), tm + 4))
    if STAMP:
        k('s_waitcnt vmcnt(0)')
        k('s_memtime s[90:91]')
        k('s_memrealtime s[92:93]')
        k('s_waitcnt lgkmcnt(0)')
        Ls = k.newlabel('st')
        k('s_cmp_lg_u32 s2, %s' % STAMP)
        k('s_cbranch_scc1 %s' % Ls)
        k('s_cmp_lg_u32 s5, 0')
        k('s_cbranch_scc1 %s' % Ls)
        mk_srd(k, 8, PTR('dbg'), 0, 256)
        k('s_sub_u32 s92, s92, s94')
        k('s_add_u32 s92, s92, s84')
        for i in range(1, 5):
            k('s_sub_u32 s%d, s%d, s84' % (84 + 2 * i, 84 + 2 * i))
            k('v_mov_b32 v1, s%d' % (84 + 2 * i))
            k('v_mov_b32 v2, 0')
            k('buffer_store_dword v1, v2, s[8:11], 0 offen offset:%d' % (4 * i))
        k.label(Ls)
    k('s_branch %s' % L_end)
    for (L_slow, L_back, cur, nxt) in slow:
        k.label(L_slow)
        k('s_nop 7')
        k('s_nop 7')
        rowmax()
        k('v_max_f32 v%d, 0, v%d' % (tm, tm))
        k('v_sub_f32 v%d, 0, v%d' % (tm + 1, tm))
        k('v_exp_f32 v%d, v%d' % (tm + 1, tm + 1))
        for i in range(16):
            k('v_sub_f32 v%d, v%d, v%d' % (nm + i, nm + i, tm))
        for i in range(16):
            k('v_sub_f32 v%d, v%d, v%d' % (cur + i, cur + i, tm))
        for i in range(16):
            k('v_sub_f32 v%d, v%d, v%d' % (nxt + i, nxt + i, tm))
        for i in range(16):
            k('v_mul_f32 v%d, v%d, v%d' % (o_ + i, o_ + i, tm + 1))
        k('s_branch %s' % L_back)
    k.label(L_end)
    k('s_endpgm')
    idx = k.lines.index(INIT + ':')
    init = ['    v_mov_b32 v%d, 0' % (p_ + i) for i in range(8)] + \
           ['    v_mov_b32 v%d, 0' % (vfs[1] + i) for i in range(8)]
    k.lines[idx:idx] = init
    return k, va.n, 0, NBUF * CHB, NWG_ATTN
```

```python
from common import *
from gemm import fbits, PTR, QSCALE, Ctx


import os
STAMP = os.environ.get('STAMP')


def gemm32_kernel(name, *, K, NB, mtiles, ntiles, xsrc, XS, wsrcs, WS, N, epi, cs_base, dst=None, proto=1,
                  xcdmap=False, extra=None):
    k = Kern(name)
    nst = [0]

    def stamp():
        if STAMP:
            k('s_memtime s[%d:%d]' % (84 + 2 * nst[0], 85 + 2 * nst[0]))
            nst[0] += 1
    c = Ctx()
    TM = TN = 128
    nmat = len(wsrcs)
    S = K // 64
    XB = TM * 128
    WB = 64 * 256
    STAGE = XB + nmat * WB
    SB = 2048
    AUX = 0
    LDS = SB + NB * STAGE
    NWG = mtiles * ntiles
    DPW = 4 + 4 * nmat
    c.__dict__.update(locals())

    if xcdmap:
        NWG = 256
    L_end = k.newlabel('end')
    k('s_cmp_ge_u32 s2, %d' % NWG)
    k('s_cbranch_scc1 %s' % L_end)
    stamp()
    k('s_load_dwordx16 s[64:79], s[0:1], 0')
    k('s_load_dwordx4 s[80:83], s[0:1], 64')
    if xcdmap:
        NWG = 256
        k('s_and_b32 s3, s2, 1')
        k('s_lshl_b32 s3, s3, 3')
        k('s_bfe_u32 s4, s2, 0x30003')
        k('s_add_u32 s3, s3, s4')
        k('s_lshr_b32 s5, s2, 6')
        k('s_bfe_u32 s6, s2, 0x20001')
        k('s_lshl_b32 s4, s6, 2')
        k('s_cmp_eq_u32 s6, 3')
        k('s_cselect_b32 s7, 1, 0')
        k('s_sub_u32 s4, s4, s7')
        k('s_add_u32 s4, s4, s5')
        k('s_cmp_ge_u32 s6, 2')
        k('s_cselect_b32 s7, 3, 4')
        k('s_cmp_ge_u32 s5, s7')
        k('s_cbranch_scc1 %s' % L_end)
    else:
        k('s_and_b32 s3, s2, %d' % (mtiles - 1))
        k('s_lshr_b32 s4, s2, %d' % (mtiles.bit_length() - 1))
    if os.environ.get('FORCE0'):
        k('s_mov_b32 s3, 0')
        k('s_mov_b32 s4, 0')
    va = VAlloc(1)
    vl = va.get()
    k('v_and_b32 v%d, 63, v0' % vl)
    k('v_lshrrev_b32 v2, 6, v0')
    va.get()
    k('s_nop 0')
    k('v_readfirstlane_b32 s5, v2')
    k('s_lshr_b32 s62, s5, 2')
    k('s_and_b32 s5, s5, 3')
    k('s_mul_i32 s56, s3, %d' % TM)
    k('s_mul_i32 s57, s4, %d' % TN)
    k('s_lshr_b32 s6, s5, 1')
    k('s_and_b32 s7, s5, 1')
    ta = va.get()
    tb_ = va.get()
    vxd = [va.get(), va.get()]
    vwd = va.get()
    k('s_mov_b32 s58, %d' % XS)
    for par in range(2):
        k('v_lshrrev_b32 v%d, 4, v%d' % (ta, vl))
        if par:
            k('v_add_u32 v%d, 4, v%d' % (ta, ta))
        k('v_xor_b32 v%d, v%d, v%d' % (ta, ta, vl))
        k('v_and_b32 v%d, 7, v%d' % (ta, ta))
        k('v_lshrrev_b32 v%d, 3, v%d' % (tb_, vl))
        k('v_add_u32 v%d, s56, v%d' % (tb_, tb_))
        k('v_mul_lo_u32 v%d, v%d, s58' % (vxd[par], tb_))
        k('v_lshl_add_u32 v%d, v%d, 4, v%d' % (vxd[par], ta, vxd[par]))
    k('v_lshrrev_b32 v%d, 4, v%d' % (ta, vl))
    k('v_lshlrev_b32 v%d, 2, v%d' % (tb_, ta))
    k('v_xor_b32 v%d, v%d, v%d' % (tb_, tb_, vl))
    k('v_and_b32 v%d, 15, v%d' % (tb_, tb_))
    k('v_mul_u32_u24 v%d, %d, v%d' % (vwd, WS, ta))
    k('v_lshl_add_u32 v%d, v%d, 4, v%d' % (vwd, tb_, vwd))
    k('s_lshl_b32 s58, s57, 1')
    k('v_add_u32 v%d, s58, v%d' % (vwd, vwd))
    k('s_lshl_b32 s52, s5, 12')
    k('s_mul_i32 s48, s5, %d' % (32 * XS))
    k('s_mul_i32 s49, s5, %d' % (16 * WS))
    k('s_mov_b32 s50, %d' % SB)
    k('s_mov_b32 s51, %d' % SB)
    k('s_waitcnt lgkmcnt(0)')

    def srd_of(sd, src):
        if src[0] == 'ptr':
            mk_srd(k, sd, PTR(src[1]), 0, KSIZE[src[1]])
        else:
            mk_srd(k, sd, PTR('ws'), src[1], src[2])
    srd_of(8, xsrc)
    for m, w in enumerate(wsrcs):
        mk_srd(k, 12 + 4 * m, PTR(w), 0, KSIZE[w])

    def dma_q(qi):
        ops = []
        g = ['s_add_u32 s53, s50, s52',
             's_add_u32 m0, s53, %d' % (qi * 1024),
             's_add_u32 s54, s48, %d' % (qi * 8 * XS),
             'buffer_load_dwordx4 v%d, s[8:11], s54 offen lds' % vxd[qi & 1]]
        ops.append(g)
        for m in range(nmat):
            g = ['s_add_u32 m0, s53, %d' % (XB + m * WB + qi * 1024),
                 's_add_u32 s54, s49, %d' % (qi * 4 * WS),
                 'buffer_load_dwordx4 v%d, s[%d:%d], s54 offen lds' % (vwd, 12 + 4 * m, 15 + 4 * m)]
            ops.append(g)
        if qi == 3:
            ops.append(['s_add_u32 s48, s48, 128', 's_add_u32 s49, s49, %d' % (64 * WS),
                        's_add_u32 s50, s50, %d' % STAGE, 's_cmp_eq_u32 s50, %d' % (SB + NB * STAGE),
                        's_cselect_b32 s50, %d, s50' % SB])
        return ops

    L_comp = k.newlabel('comp')
    k('s_cmp_eq_u32 s62, 0')
    k('s_cbranch_scc1 %s' % L_comp)
    for s in range(NB - 1):
        for qi in range(4):
            emit_list(k, dma_q(qi))
    lv = VAlloc(16)
    lxs, lws, lxa, lwa = lv.get(), lv.get(), lv.get(), lv.get()
    lone, llo, lhi = lv.get(), lv.get(), lv.get()
    lsx = lv.get(4, 2)
    lu = lv.get(8, 2)
    lcs = lv.get(8 * nmat, 4)
    lxr = lv.get(16, 4)
    lwr = lv.get(16 * nmat, 4)
    lt = lv.get(4)

    def process():
        pass

    if proto == 2:
        for qi in range(4):
            emit_list(k, dma_q(qi))
        k('s_waitcnt vmcnt(%d)' % ((NB - 1) * DPW))
        k('s_barrier')
        process()
        k('s_waitcnt vmcnt(%d)' % ((NB - 2) * DPW))
        k('s_barrier')
        process()
        nl = S - NB
        if nl:
            k('s_mov_b32 s55, %d' % nl)
            Lld = k.newlabel('ld')
            k.label(Lld)
            k('s_barrier')
            for qi in range(4):
                emit_list(k, dma_q(qi))
            k('s_waitcnt vmcnt(%d)' % ((NB - 2) * DPW))
            k('s_barrier')
            process()
            k('s_sub_u32 s55, s55, 1')
            k('s_cmp_lg_u32 s55, 0')
            k('s_cbranch_scc1 %s' % Lld)
        for st in range(nl + 1, S - 1):
            k('s_barrier')
            k('s_waitcnt vmcnt(%d)' % (max(0, S - 1 - (st + 1)) * DPW))
            k('s_barrier')
            process()
    else:
        k('s_waitcnt vmcnt(%d)' % ((NB - 2) * DPW))
        k('s_barrier')
        process()
        nl = S - NB + 1
        k('s_mov_b32 s55, %d' % nl)
        Lld = k.newlabel('ld')
        k.label(Lld)
        k('s_waitcnt vmcnt(%d)' % ((NB - 3) * DPW))
        k('s_barrier')
        for qi in range(4):
            emit_list(k, dma_q(qi))
        process()
        k('s_sub_u32 s55, s55, 1')
        k('s_cmp_lg_u32 s55, 0')
        k('s_cbranch_scc1 %s' % Lld)
        for j in range(nl + 1, S):
            k('s_waitcnt vmcnt(%d)' % (max(0, S - 1 - j) * DPW))
            k('s_barrier')
            process()
    if extra is not None:
        extra(k, lv, vl)
    k('s_endpgm')
    k.label(L_comp)

    mk_srd(k, 20, PTR('ws'), 0, 0x100000)
    if dst is not None:
        srd_of(24, dst)
    vt = va.get(16, 4)
    vcs = va.get()
    vta = va.get()
    k('v_add_u32 v%d, s56, v0' % vta)
    k('v_lshlrev_b32 v%d, 6, v%d' % (vta, vta))
    k('v_add_u32 v%d, 0x%x, v%d' % (vta, ST_OFF, vta))
    for i in range(4):
        k('buffer_load_dwordx4 %s, v%d, s[20:23], 0 offen offset:%d' % (vr(vt + 4 * i, 4), vta, 16 * i))
    vci = va.get()
    k('v_add_u32 v%d, s57, v0' % vci)
    if nmat == 2:
        k('v_mov_b32 v%d, %d' % (vcs, cs_base[0]))
        k('v_mov_b32 v%d, %d' % (vta, cs_base[1] - TN))
        k('v_cmp_gt_u32 vcc, %d, v0' % TN)
        k('s_nop 1')
        k('v_cndmask_b32 v%d, v%d, v%d, vcc' % (vcs, vta, vcs))
        k('v_add_u32 v%d, v%d, v%d' % (vci, vci, vcs))
    elif cs_base[0]:
        k('v_add_u32 v%d, %d, v%d' % (vci, cs_base[0], vci))
    k('v_lshlrev_b32 v%d, 2, v%d' % (vci, vci))
    k('buffer_load_dword v%d, v%d, s[20:23], 0 offen' % (vcs, vci))

    vxr = [va.get() for _ in range(4)]
    vwr = [va.get() for _ in range(2)]
    vxa = [va.get() for _ in range(4)]
    vwa = [va.get() for _ in range(2)]
    vh = va.get()
    vt31 = va.get()
    k('v_lshrrev_b32 v%d, 5, v%d' % (vh, vl))
    k('v_and_b32 v%d, 31, v%d' % (vt31, vl))
    k('s_lshl_b32 s58, s6, 13')
    for s in range(4):
        k('v_bfe_u32 v%d, v%d, 1, 3' % (ta, vt31))
        k('v_add_u32 v%d, %d, v%d' % (tb_, 2 * s, vh))
        k('v_xor_b32 v%d, v%d, v%d' % (ta, ta, tb_))
        k('v_lshlrev_b32 v%d, 7, v%d' % (tb_, vt31))
        k('v_lshl_add_u32 v%d, v%d, 4, v%d' % (vxr[s], ta, tb_))
        k('v_add_u32 v%d, s58, v%d' % (vxr[s], vxr[s]))
    vrr = va.get()
    k('v_bfe_u32 v%d, v%d, 2, 2' % (vrr, vl))
    for nb in range(2):
        k('s_lshl_b32 s58, s7, 1')
        k('s_add_u32 s58, s58, %d' % nb)
        k('v_xor_b32 v%d, s58, v%d' % (ta, vrr))
        k('v_lshlrev_b32 v%d, 6, v%d' % (ta, ta))
        k('v_lshl_add_u32 v%d, v%d, 8, v%d' % (ta, vrr, ta))
        k('v_lshl_add_u32 v%d, v%d, 11, v%d' % (ta, vh, ta))
        k('v_and_b32 v%d, 1, v%d' % (tb_, vl))
        k('v_lshl_add_u32 v%d, v%d, 5, v%d' % (ta, tb_, ta))
        k('v_bfe_u32 v%d, v%d, 4, 1' % (tb_, vl))
        k('v_lshl_add_u32 v%d, v%d, 4, v%d' % (ta, tb_, ta))
        k('v_bfe_u32 v%d, v%d, 1, 1' % (tb_, vl))
        k('v_lshl_add_u32 v%d, v%d, 3, v%d' % (ta, tb_, ta))
        k('v_add_u32 v%d, %d, v%d' % (vwr[nb], XB, ta))

    xf = [[va.get(4, 4) for _ in range(2)] for _ in range(3)]
    wf = [[[va.get(4, 4) for _ in range(2)] for _ in range(nmat)] for _ in range(3)]
    nacc = nmat * 4 * 16
    accb = va.get(nacc, 4)
    acc = lambda m, nb, tb: accb + ((m * 2 + nb) * 2 + tb) * 16

    def aux_hook():
        k('s_waitcnt vmcnt(0)')
        for i in range(1, 8):
            k('v_add_f32 v%d, v%d, v%d' % (vt, vt, vt + 2 * i))
            k('v_add_f32 v%d, v%d, v%d' % (vt + 1, vt + 1, vt + 2 * i + 1))
        k('v_mul_f32 v%d, %s, v%d' % (vt, fbits(1.0 / D), vt))
        k('v_mul_f32 v%d, %s, v%d' % (vt + 1, fbits(1.0 / D), vt + 1))
        k('v_fma_f32 v%d, -v%d, v%d, v%d' % (vt + 1, vt, vt, vt + 1))
        k('v_max_f32 v%d, 0, v%d' % (vt + 1, vt + 1))
        k('v_add_f32 v%d, %s, v%d' % (vt + 1, fbits(1e-5), vt + 1))
        k('v_rsq_f32 v%d, v%d' % (vt + 1, vt + 1))
        k('s_nop 0')
        k('v_mul_f32 v%d, v%d, v%d' % (vt, vt, vt + 1))
        k('v_sub_f32 v%d, 0, v%d' % (vt, vt))
        k('v_lshlrev_b32 v%d, 3, v0' % ta)
        L1 = k.newlabel('aux')
        k('v_cmp_gt_u32 vcc, %d, v0' % TM)
        k('s_and_saveexec_b64 s[60:61], vcc')
        k('s_cbranch_execz %s' % L1)
        k('ds_write_b64 v%d, %s offset:%d' % (ta, vr(vt, 2), AUX))
        k.label(L1)
        k('s_mov_b64 exec, s[60:61]')
        L2 = k.newlabel('aux')
        k('v_lshlrev_b32 v%d, 2, v0' % ta)
        k('v_cmp_gt_u32 vcc, %d, v0' % (nmat * TN))
        k('s_and_saveexec_b64 s[60:61], vcc')
        k('s_cbranch_execz %s' % L2)
        k('ds_write_b32 v%d, v%d offset:%d' % (ta, vcs, AUX + TM * 8))
        k.label(L2)
        k('s_mov_b64 exec, s[60:61]')

    c.__dict__.update(locals())

    def read_ops(st, s):
        ops = []
        for tb in range(2):
            ops.append('ds_read_b128 %s, v%d offset:%d' % (vr(xf[st][tb], 4), vxa[s], tb * 4096))
        for m in range(nmat):
            for nb in range(2):
                for i in range(2):
                    ops.append('ds_read_b64_tr_b16 %s, v%d offset:%d' % (
                        vr(wf[st][m][nb] + 2 * i, 2), vwa[nb], m * WB + (16 * s + 4 * i) * 256))
        return ops

    def addr_ops():
        ops = ['v_add_u32 v%d, s51, v%d' % (vxa[s], vxr[s]) for s in range(4)]
        ops += ['v_add_u32 v%d, s51, v%d' % (vwa[nb], vwr[nb]) for nb in range(2)]
        ops += ['s_add_u32 s51, s51, %d' % STAGE, 's_cmp_eq_u32 s51, %d' % (SB + NB * STAGE),
                's_cselect_b32 s51, %d, s51' % SB]
        return ops

    def mfma_ops(st, swap, zero=False):
        ops = []
        for m in range(nmat):
            for nb in range(2):
                for tb in range(2):
                    a, b = vr(wf[st][m][nb], 4), vr(xf[st][tb], 4)
                    if swap:
                        a, b = b, a
                    d = vr(acc(m, nb, tb), 16)
                    ops.append('v_mfma_f32_32x32x16_bf16 %s, %s, %s, %s' % (d, a, b, '0' if zero else d))
        return ops

    def iteration_old(swap, first, do_dma, vm):
        for s in range(4):
            if s == 0:
                k('s_waitcnt lgkmcnt(0)')
                k('s_barrier')
                emit_list(k, addr_ops())
            mem = read_ops(s & 1, s)
            if os.environ.get('NOREAD'):
                mem = mem[:int(os.environ['NOREAD'])] + ['s_nop 0', 's_nop 0']
            mf = [] if (first and s == 0) else mfma_ops((s + 1) & 1, swap)
            emit_list(k, mem[:2])
            emit_list(k, interleave(mf, mem[2:]))
            k('s_waitcnt lgkmcnt(0)')

    NR = 2 + 4 * nmat

    def substep(t, swap):
        T = 4 * S
        mem = []
        if proto == 2 and t % 4 == 0 and t >= 4 and t + 4 < T:
            k('s_barrier')
        if t + 2 < T:
            if (t + 2) % 4 == 0:
                k('s_barrier')
                emit_list(k, addr_ops())
            mem = read_ops((t + 2) % 3, (t + 2) % 4)
        mf = mfma_ops(t % 3, swap, zero=(t == 0))
        emit_list(k, mem[:2])
        emit_list(k, interleave(mf, mem[2:]))
        if t + 1 < T:
            k('s_waitcnt lgkmcnt(%d)' % (NR if t + 2 < T else 0))

    def main(swap):
        nst[0] = 1
        stamp()
        k('s_waitcnt lgkmcnt(0)')
        k('s_barrier')
        emit_list(k, addr_ops())
        emit_list(k, read_ops(0, 0))
        emit_list(k, read_ops(1, 1))
        k('s_waitcnt lgkmcnt(%d)' % NR)
        for t in range(4):
            substep(t, swap)
        stamp()
        aux_hook()
        nloop = (S - 2) // 3
        if nloop:
            k('s_mov_b32 s55, %d' % nloop)
            lab = k.newlabel('loop')
            k.label(lab)
            for t in range(4, 16):
                substep(t, swap)
            k('s_sub_u32 s55, s55, 1')
            k('s_cmp_lg_u32 s55, 0')
            k('s_cbranch_scc1 %s' % lab)
        for t in range(4 + 12 * nloop, 4 * S):
            substep(t, swap)
        k('s_nop 7')
        k('s_nop 7')
        stamp()

    c.main = main
    epi(k, c)
    if STAMP:
        k('s_waitcnt vmcnt(0)')
        nst[0] = 4
        stamp()
        k('s_waitcnt lgkmcnt(0)')
        Ls = k.newlabel('st')
        k('s_cmp_lg_u32 s2, %s' % STAMP)
        k('s_cbranch_scc1 %s' % Ls)
        k('s_cmp_lg_u32 s5, 0')
        k('s_cbranch_scc1 %s' % Ls)
        mk_srd(k, 8, PTR('dbg'), 0, 256)
        for i in range(1, 5):
            k('s_sub_u32 s%d, s%d, s84' % (84 + 2 * i, 84 + 2 * i))
            k('v_mov_b32 v1, s%d' % (84 + 2 * i))
            k('v_mov_b32 v2, 0')
            k('buffer_store_dword v1, v2, s[8:11], 0 offen offset:%d' % (4 * i))
        k.label(Ls)
    k.label(L_end)
    k('s_endpgm')
    return k, va.n, 0, LDS, NWG


def epi32_qkv(k, c):
    va = c.va
    vl, vh, vt31 = c.vl, c.vh, c.vt31
    L_v = k.newlabel('vpath')
    L_done = k.newlabel('qkvdone')
    mk_srd(k, 24, PTR('ws'), QF_OFF, 12 << 20)
    k('s_cmp_ge_u32 s4, 10')
    k('s_cbranch_scc1 %s' % L_v)
    big = va.get(64, 4)
    vst = big
    vto = big + 4
    vno = big + 8
    vcsr = big + 16
    vp = big + 48
    vx = big + 56
    k('s_lshl_b32 s58, s4, 5')
    k('s_lshl_b32 s60, s7, 4')
    k('s_add_u32 s58, s58, s60')
    k('s_cmp_lt_u32 s4, 5')
    k('s_cselect_b32 s61, 0, 160')
    k('s_cselect_b32 s60, 0, 0x400000')
    k('s_sub_u32 s58, s58, s61')
    k('s_mov_b32 s61, 52429')
    for nb in range(2):
        for j in range(4):
            o = vno + 4 * nb + j
            k('v_lshl_add_u32 v%d, v%d, 2, s58' % (vx + 1, vh))
            k('v_add_u32 v%d, %d, v%d' % (vx + 1, nb * 8 + j, vx + 1))
            k('v_mul_lo_u32 v%d, v%d, s61' % (vx + 2, vx + 1))
            k('v_lshrrev_b32 v%d, 18, v%d' % (vx + 2, vx + 2))
            k('v_mul_u32_u24 v%d, 5, v%d' % (vx + 3, vx + 2))
            k('v_sub_u32 v%d, v%d, v%d' % (vx + 3, vx + 1, vx + 3))
            k('v_lshlrev_b32 v%d, 17, v%d' % (o, vx + 2))
            k('v_lshrrev_b32 v%d, 2, v%d' % (vx + 1, vx + 3))
            k('v_lshl_add_u32 v%d, v%d, 10, v%d' % (o, vx + 1, o))
            k('v_bfe_u32 v%d, v%d, 1, 1' % (vx + 1, vx + 3))
            k('v_lshl_add_u32 v%d, v%d, 9, v%d' % (o, vx + 1, o))
            k('v_and_b32 v%d, 1, v%d' % (vx + 1, vx + 3))
            k('v_lshl_add_u32 v%d, v%d, 3, v%d' % (o, vx + 1, o))
            k('v_add_u32 v%d, s60, v%d' % (o, o))
    k('s_lshl_b32 s58, s3, 2')
    k('s_lshl_b32 s60, s6, 1')
    k('s_add_u32 s58, s58, s60')
    k('s_lshl_b32 s58, s58, 11')
    k('v_lshlrev_b32 v%d, 4, v%d' % (vto, vt31))
    k('v_add_u32 v%d, s58, v%d' % (vto, vto))
    for nb in range(2):
        for j in range(4):
            k('v_add_u32 v%d, v%d, v%d' % (vno + 4 * nb + j, vno + 4 * nb + j, vto))
    c.main(False)
    k('s_cmp_lt_u32 s4, 5')
    k('s_cselect_b32 s59, %s, 1.0' % fbits(QSCALE))
    k('s_lshl_b32 s58, s6, 9')
    k('v_lshlrev_b32 v%d, 3, v%d' % (vx, vt31))
    k('v_add_u32 v%d, s58, v%d' % (vx, vx))
    for tb in range(2):
        k('ds_read_b64 %s, v%d offset:%d' % (vr(vst + 2 * tb, 2), vx, c.AUX + tb * 256))
    k('s_lshl_b32 s58, s7, 8')
    k('v_lshlrev_b32 v%d, 6, v%d' % (vx + 1, vh))
    k('v_add_u32 v%d, s58, v%d' % (vx + 1, vx + 1))
    for nb in range(2):
        for j in range(4):
            k('ds_read_b128 %s, v%d offset:%d' % (vr(vcsr + 16 * nb + 4 * j, 4), vx + 1,
                                                   c.AUX + c.TM * 8 + nb * 128 + j * 16))
    k('s_waitcnt lgkmcnt(0)')
    for tb in range(2):
        k('v_mul_f32 v%d, s59, v%d' % (vst + 2 * tb, vst + 2 * tb))
        k('v_mul_f32 v%d, s59, v%d' % (vst + 2 * tb + 1, vst + 2 * tb + 1))
    vkm = vx + 3
    k('v_mov_b32 v%d, 0' % vkm)
    for tb in range(2):
        for nb in range(2):
            a = c.acc(0, nb, tb)
            for j in range(4):
                q = vp + 4 * (j & 1)
                P = lambda r: 'v[%d:%d]' % (r, r + 1)
                st_ = P(vst + 2 * tb)
                for i in range(0, 4, 2):
                    k('v_pk_mul_f32 %s, %s, %s op_sel:[0,1] op_sel_hi:[1,1]' % (P(q + i), P(a + 4 * j + i), st_))
                for i in range(0, 4, 2):
                    k('v_pk_fma_f32 %s, %s, %s, %s op_sel_hi:[1,0,1]' % (
                        P(q + i), P(vcsr + 16 * nb + 4 * j + i), st_, P(q + i)))
                k('v_max3_f32 v%d, abs(v%d), abs(v%d), v%d' % (vkm, q, q + 1, vkm))
                k('v_max3_f32 v%d, abs(v%d), abs(v%d), v%d' % (vkm, q + 2, q + 3, vkm))
                k('v_cvt_pk_bf16_f32 v%d, v%d, v%d' % (q, q, q + 1))
                k('v_cvt_pk_bf16_f32 v%d, v%d, v%d' % (q + 1, q + 2, q + 3))
                k('buffer_store_dwordx2 %s, v%d, s[24:27], 0 offen offset:%d' % (vr(q, 2), vno + 4 * nb + j, tb * 2048))
    k('s_cmp_lt_u32 s4, 5')
    k('s_cbranch_scc1 %s' % L_done)
    for sh in (1, 2, 4, 8, 16, 32):
        k('v_xor_b32 v%d, %d, v%d' % (vx, sh, vl))
        k('v_lshlrev_b32 v%d, 2, v%d' % (vx, vx))
        k('ds_bpermute_b32 v%d, v%d, v%d' % (vx + 1, vx, vkm))
        k('s_waitcnt lgkmcnt(0)')
        k('v_max_f32 v%d, v%d, v%d' % (vkm, vkm, vx + 1))
    k('s_sub_u32 s58, s2, 80')
    k('s_lshl_b32 s58, s58, 2')
    k('s_add_u32 s58, s58, s5')
    k('s_lshl_b32 s58, s58, 2')
    k('s_add_u32 s58, s58, 0x%x' % KM_OFF)
    k('v_mov_b32 v%d, s58' % vx)
    k('buffer_store_dword v%d, v%d, s[20:23], 0 offen' % (vkm, vx))
    k('s_branch %s' % L_done)

    k.label(L_v)
    vst2 = big
    vcs2 = big + 32
    vno2 = big + 34
    vy = big + 36
    vx = big + 56
    k('v_bfe_u32 v%d, v%d, 2, 1' % (vx, vl))
    k('v_lshlrev_b32 v%d, 4, v%d' % (vx, vx))
    k('v_bfe_u32 v%d, v%d, 3, 2' % (vx + 1, vl))
    k('v_lshl_add_u32 v%d, v%d, 2, v%d' % (vx, vx + 1, vx))
    k('v_and_b32 v%d, 3, v%d' % (vx + 1, vl))
    k('v_add_u32 v%d, v%d, v%d' % (vx, vx, vx + 1))
    k('s_lshl_b32 s58, s7, 6')
    k('v_add_u32 v%d, s58, v%d' % (vx, vx))
    k('s_sub_u32 s58, s57, 1280')
    k('s_movk_i32 s61, 3277')
    for nb in range(2):
        o = vno2 + nb
        k('v_add_u32 v%d, s58, v%d' % (vx + 2, vx))
        if nb:
            k('v_add_u32 v%d, 32, v%d' % (vx + 2, vx + 2))
        k('v_mul_lo_u32 v%d, v%d, s61' % (vx + 3, vx + 2))
        k('v_lshrrev_b32 v%d, 16, v%d' % (vx + 3, vx + 3))
        k('v_mul_u32_u24 v%d, 20, v%d' % (o, vx + 3))
        k('v_sub_u32 v%d, v%d, v%d' % (o, vx + 2, o))
        k('v_lshlrev_b32 v%d, 4, v%d' % (o, o))
        k('v_lshl_add_u32 v%d, v%d, 17, v%d' % (o, vx + 3, o))
        k('v_lshl_add_u32 v%d, v%d, 9, v%d' % (o, vh, o))
    k('s_lshl_b32 s58, s3, 2')
    k('s_lshl_b32 s60, s6, 1')
    k('s_add_u32 s58, s58, s60')
    k('s_lshl_b32 s58, s58, 11')
    k('s_add_u32 s58, s58, 0x%x' % (VF_OFF - QF_OFF))
    for nb in range(2):
        k('v_add_u32 v%d, s58, v%d' % (vno2 + nb, vno2 + nb))
    c.main(True)
    k('v_lshlrev_b32 v%d, 2, v%d' % (vx + 1, vx))
    for nb in range(2):
        k('ds_read_b32 v%d, v%d offset:%d' % (vcs2 + nb, vx + 1, c.AUX + c.TM * 8 + nb * 128))
    k('s_lshl_b32 s58, s6, 9')
    k('v_lshlrev_b32 v%d, 5, v%d' % (vx + 1, vh))
    k('v_add_u32 v%d, s58, v%d' % (vx + 1, vx + 1))
    for tb in range(2):
        for j in range(4):
            for hh in range(2):
                k('ds_read_b128 %s, v%d offset:%d' % (vr(vst2 + 8 * j + 4 * hh, 4), vx + 1,
                                                       c.AUX + tb * 256 + j * 64 + hh * 16))
        k('s_waitcnt lgkmcnt(0)')
        for nb in range(2):
            a = c.acc(0, nb, tb)
            for t in range(2):
                for r in range(8):
                    rr = 8 * t + r
                    k('v_mul_f32 v%d, v%d, v%d' % (vy + r, a + rr, vst2 + 2 * rr + 1))
                    k('v_fmac_f32 v%d, v%d, v%d' % (vy + r, vcs2 + nb, vst2 + 2 * rr))
                for i in range(4):
                    k('v_cvt_pk_bf16_f32 v%d, v%d, v%d' % (vy + i, vy + 2 * i, vy + 2 * i + 1))
                k('buffer_store_dwordx4 %s, v%d, s[24:27], 0 offen offset:%d' % (
                    vr(vy, 4), vno2 + nb, tb * 2048 + t * 1024))
                k('s_nop 1')
    k.label(L_done)


def epi32_geglu(k, c):
    va = c.va
    vl, vh, vt31 = c.vl, c.vh, c.vt31
    c.main(False)
    fb = c.xf[0][0]
    vcg = c.vt
    vcu = fb
    tg = fb + 16
    tu = fb + 24
    vst = fb + 32
    vx = fb + 36
    vo = fb + 40
    t2 = fb + 44
    vC = fb + 52
    k('s_lshl_b32 s58, s6, 9')
    k('v_lshlrev_b32 v%d, 3, v%d' % (vx, vt31))
    k('v_add_u32 v%d, s58, v%d' % (vx, vx))
    for tb in range(2):
        k('ds_read_b64 %s, v%d offset:%d' % (vr(vst + 2 * tb, 2), vx, c.AUX + tb * 256))
    k('s_lshl_b32 s58, s3, 1')
    k('s_add_u32 s58, s58, s6')
    k('s_mul_i32 s58, s58, 54')
    k('s_lshl_b32 s60, s4, 2')
    k('s_add_u32 s58, s58, s60')
    k('s_lshl_b32 s60, s7, 1')
    k('s_add_u32 s58, s58, s60')
    k('s_lshl_b32 s58, s58, 12')
    k('v_bfe_u32 v%d, v%d, 2, 2' % (vx + 1, vt31))
    k('v_sub_u32 v%d, 0, v%d' % (vx + 1, vx + 1))
    k('v_lshlrev_b32 v%d, 1, v%d' % (vx + 2, vh))
    k('v_xor_b32 v%d, v%d, v%d' % (vx + 1, vx + 1, vx + 2))
    k('v_and_b32 v%d, 3, v%d' % (vx + 1, vx + 1))
    k('v_lshlrev_b32 v%d, 6, v%d' % (vo, vt31))
    k('v_add_u32 v%d, s58, v%d' % (vo, vo))
    k('v_xor_b32 v%d, 1, v%d' % (vx + 2, vx + 1))
    k('v_lshl_add_u32 v%d, v%d, 4, v%d' % (vo + 1, vx + 2, vo))
    k('v_lshl_add_u32 v%d, v%d, 4, v%d' % (vo, vx + 1, vo))
    k('s_lshl_b32 s58, s7, 6')
    k('s_add_u32 s58, s58, s57')
    k('s_cmp_lt_u32 s58, %d' % c.N)
    k('s_cselect_b32 s58, 0, 0x7ff00000')
    k('v_add_u32 v%d, s58, v%d' % (vo, vo))
    k('v_add_u32 v%d, s58, v%d' % (vo + 1, vo + 1))
    C1 = -2.0 * 1.4426950408889634 * 0.7978845608028654
    C2 = C1 * 0.044715
    k('v_mov_b32 v%d, %s' % (vC, fbits(C1)))
    k('v_mov_b32 v%d, %s' % (vC + 1, fbits(C2)))
    k('v_mov_b32 v%d, 1.0' % (vC + 2))
    k('s_lshl_b32 s58, s7, 8')
    k('v_lshlrev_b32 v%d, 6, v%d' % (vx + 1, vh))
    k('v_add_u32 v%d, s58, v%d' % (vx + 1, vx + 1))
    for nb in range(2):
        for j in range(4):
            k('ds_read_b128 %s, v%d offset:%d' % (vr(vcg + 4 * j, 4), vx + 1, c.AUX + c.TM * 8 + nb * 128 + j * 16))
            k('ds_read_b128 %s, v%d offset:%d' % (vr(vcu + 4 * j, 4), vx + 1,
                                                   c.AUX + c.TM * 8 + c.TN * 4 + nb * 128 + j * 16))
        k('s_waitcnt lgkmcnt(0)')
        for tb in range(2):
            ag = c.acc(0, nb, tb)
            au = c.acc(1, nb, tb)
            for half in range(2):
                P = lambda r: 'v[%d:%d]' % (r, r + 1)
                st_ = P(vst + 2 * tb)
                for i in range(0, 8, 2):
                    r = 8 * half + i
                    k('v_pk_mul_f32 %s, %s, %s op_sel:[0,1] op_sel_hi:[1,1]' % (P(tg + i), P(ag + r), st_))
                    k('v_pk_mul_f32 %s, %s, %s op_sel:[0,1] op_sel_hi:[1,1]' % (P(tu + i), P(au + r), st_))
                    k('v_pk_fma_f32 %s, %s, %s, %s op_sel_hi:[1,0,1]' % (P(tg + i), P(vcg + r), st_, P(tg + i)))
                    k('v_pk_fma_f32 %s, %s, %s, %s op_sel_hi:[1,0,1]' % (P(tu + i), P(vcu + r), st_, P(tu + i)))
                for i in range(0, 8, 2):
                    k('v_pk_mul_f32 %s, %s, %s' % (P(t2 + i), P(tg + i), P(tg + i)))
                    k('v_pk_mul_f32 %s, %s, %s' % (P(tu + i), P(tu + i), P(tg + i)))
                    k('v_pk_fma_f32 %s, %s, %s, %s op_sel:[0,1,0] op_sel_hi:[1,1,0]' % (P(t2 + i), P(t2 + i), P(vC), P(vC)))
                    k('v_pk_mul_f32 %s, %s, %s' % (P(t2 + i), P(t2 + i), P(tg + i)))
                for i in range(8):
                    k('v_exp_f32 v%d, v%d' % (t2 + i, t2 + i))
                k('s_nop 0')
                for i in range(0, 8, 2):
                    k('v_pk_add_f32 %s, %s, %s op_sel_hi:[1,0]' % (P(t2 + i), P(t2 + i), P(vC + 2)))
                for i in range(8):
                    k('v_rcp_f32 v%d, v%d' % (t2 + i, t2 + i))
                k('s_nop 0')
                for i in range(0, 8, 2):
                    k('v_pk_mul_f32 %s, %s, %s' % (P(tg + i), P(tu + i), P(t2 + i)))
                for i in range(4):
                    k('v_cvt_pk_bf16_f32 v%d, v%d, v%d' % (tu + i, tg + 2 * i, tg + 2 * i + 1))
                if nb:
                    k('s_movk_i32 s61, 4096')
                k('buffer_store_dwordx4 %s, v%d, s[24:27], %s offen offset:%d' % (
                    vr(tu, 4), vo + half, 's61' if nb else '0', tb * 2048))
                k('s_nop 1')


def qkv_extra(k, lv, vl):
    t = lv.get(8, 4)
    z = lv.get(4, 4)
    d = lv.get(4, 4)
    for i in range(4):
        k('v_mov_b32 v%d, 0' % (z + i))
    k('s_lshl_b32 s58, s2, 2')
    k('s_add_u32 s58, s58, s5')
    mk_srd(k, 24, PTR('ws'), QF_OFF, 12 << 20)
    k('v_lshlrev_b32 v%d, 4, v%d' % (t, vl))
    k('v_mov_b32 v%d, 0x7ffffff0' % (t + 2))
    k('v_cmp_lt_u32 vcc, 31, v%d' % vl)
    k('s_nop 1')
    k('v_cndmask_b32 v%d, v%d, v%d, vcc' % (t + 1, t + 2, t))
    k('v_and_b32 v%d, 31, v%d' % (t + 3, vl))
    k('v_cmp_lt_u32 vcc, 19, v%d' % (t + 3))
    k('s_nop 1')
    k('v_cndmask_b32 v%d, v%d, v%d, vcc' % (t + 4, t + 2, t))
    k('v_mov_b32 v%d, 0x3f803f80' % (t + 5))
    k('v_cmp_eq_u32 vcc, 20, v%d' % (t + 3))
    k('s_nop 1')
    k('v_cndmask_b32 v%d, v%d, v%d, vcc' % (d, z, t + 5))
    for i in range(1, 4):
        k('v_mov_b32 v%d, v%d' % (d + i, d))
    for it in range(5):
        L = k.newlabel('ex')
        k('s_add_u32 s59, s58, %d' % (960 * it))
        k('s_cmp_ge_u32 s59, 4096')
        k('s_cbranch_scc1 %s' % L)
        k('s_lshl_b32 s60, s59, 11')
        k('buffer_store_dwordx2 %s, v%d, s[24:27], s60 offen offset:1032' % (vr(z, 2), t))
        k('buffer_store_dwordx2 %s, v%d, s[24:27], s60 offen offset:1024' % (vr(z, 2), t + 1))
        k('s_lshl_b32 s60, s59, 10')
        k('s_add_u32 s60, s60, 0x800000')
        k('buffer_store_dwordx4 %s, v%d, s[24:27], s60 offen' % (vr(d, 4), t + 4))
        k.label(L)
    for (ptr, off, K, nch, first) in (('A_wo', WOP_OFF, 640, 800, 0), ('w_down', WDP_OFF, 1728, 2160, 800)):
        mk_srd(k, 28, PTR(ptr), 0, KSIZE[ptr])
        mk_srd(k, 32, PTR('ws'), off, KSIZE[ptr])
        for it in range(4):
            lo, hi = 960 * it, 960 * it + 960
            if hi <= first or lo >= first + nch:
                continue
            L = k.newlabel('pk')
            k('s_add_u32 s59, s58, %d' % (960 * it))
            k('s_sub_u32 s59, s59, %d' % first)
            k('s_cmp_ge_u32 s59, %d' % nch)
            k('s_cbranch_scc1 %s' % L)
            k('s_lshl_b32 s59, s59, 6')
            k('v_add_u32 v%d, s59, v%d' % (t, vl))
            k('v_lshlrev_b32 v%d, 4, v%d' % (t + 1, t))
            k('buffer_load_dwordx4 %s, v%d, s[28:31], 0 offen' % (vr(d, 4), t + 1))
            k('s_mov_b32 s60, 52429')
            k('v_mul_lo_u32 v%d, v%d, s60' % (t + 1, t))
            k('v_mul_hi_u32 v%d, v%d, s60' % (t + 2, t))
            k('v_lshrrev_b32 v%d, 22, v%d' % (t + 1, t + 1))
            k('v_lshl_or_b32 v%d, v%d, 10, v%d' % (t + 1, t + 2, t + 1))
            k('v_mul_u32_u24 v%d, 80, v%d' % (t + 2, t + 1))
            k('v_sub_u32 v%d, v%d, v%d' % (t + 2, t, t + 2))
            k('s_movk_i32 s60, 6554')
            k('v_mul_lo_u32 v%d, v%d, s60' % (t + 3, t + 2))
            k('v_lshrrev_b32 v%d, 16, v%d' % (t + 3, t + 3))
            k('v_mul_u32_u24 v%d, 10, v%d' % (t + 4, t + 3))
            k('v_sub_u32 v%d, v%d, v%d' % (t + 4, t + 2, t + 4))
            k('v_mul_u32_u24 v%d, %d, v%d' % (t + 3, K, t + 3))
            k('v_add_u32 v%d, v%d, v%d' % (t + 3, t + 3, t + 1))
            k('v_mul_u32_u24 v%d, 160, v%d' % (t + 3, t + 3))
            k('v_lshl_add_u32 v%d, v%d, 4, v%d' % (t + 3, t + 4, t + 3))
            k('s_waitcnt vmcnt(0)')
            k('buffer_store_dwordx4 %s, v%d, s[32:35], 0 offen' % (vr(d, 4), t + 3))
            k('s_nop 1')
            k.label(L)
```

```python
import sys
import os
sys.path.insert(0, os.path.dirname(os.path.abspath(__file__)))
from common import *
from prep import prep_kernel, NWG_PREP
from gemm import *
from attn import attn_kernel
from gemm32 import *
from gemmsk import gemmsk_kernel

XSZ = S_TOK * D * 2


def build():
    kerns = []
    launches = []


    k, nv, na = prep_kernel()
    kerns.append((k, nv, na))
    L_prep = (k.name, NWG_PREP, 256, 8192)

    def qkv(name, xsrc, extra=None):
        k, nv, na, lds, nwg = gemm32_kernel(
            name, K=640, NB=int(os.environ.get('QNB', '4')), mtiles=16, ntiles=15, xsrc=xsrc, XS=1280,
            wsrcs=['A_wqkv'], WS=3840, N=1920, epi=epi32_qkv, cs_base=(0,), extra=extra)
        kerns.append((k, nv, na))
        return (k.name, nwg, 512, lds)

    def oproj(name, resid, dst):
        k, nv, na, lds, nwg = gemmsk_kernel(name, K=640, NB=int(os.environ.get('SKNB', '4')), xsrc=('ws', O_OFF, XSZ), XS=1280, wsrc=WOP_OFF,
                                            resid=resid, dst=dst)
        kerns.append((k, nv, na))
        return (k.name, nwg, 256, lds)

    def geglu(name, xsrc):
        k, nv, na, lds, nwg = gemm32_kernel(
            name, K=640, NB=3, mtiles=16, ntiles=14, xsrc=xsrc, XS=1280,
            wsrcs=['w_gate', 'w_up'], WS=3456, N=1728, epi=epi32_geglu, cs_base=(1920, 1920 + 1728),
            dst=('ws', H_OFF, S_TOK * DF * 2), proto=int(os.environ.get('GPROTO', '1')), xcdmap=True)
        kerns.append((k, nv, na))
        return (k.name, nwg, 512, lds)

    def down(name, resid, dst, want_stats=True):
        k, nv, na, lds, nwg = gemmsk_kernel(name, K=1728, NB=int(os.environ.get('SKNB', '4')), xsrc=('ws', H_OFF, S_TOK * DF * 2), XS=3456,
                                            wsrc=WDP_OFF, resid=resid, dst=dst, want_stats=want_stats)
        kerns.append((k, nv, na))
        return (k.name, nwg, 256, lds)

    k, nv, na, lds, nwg = attn_kernel()
    kerns.append((k, nv, na))
    L_attn = (k.name, nwg, 512, lds)

    X0 = ('ptr', 'A_x')
    X1 = ('ws', X1_OFF, XSZ)
    X2 = ('ws', X2_OFF, XSZ)
    OUT = ('ptr', 'out')
    L_g = geglu('geglu_kernel', X1)
    launches = [
        L_prep,
        qkv('qkv0_kernel', X0), L_attn, oproj('oproj0_kernel', X0, X1), L_g, down('down0_kernel', X1, X2),
        qkv('qkv1_kernel', X2), L_attn, oproj('oproj1_kernel', X2, X1), L_g,
        down('down1_kernel', X1, OUT, want_stats=False),
    ]
    ref = open(os.path.join(os.path.dirname(os.path.abspath(__file__)), '..', 'cdna_kernels',
                            'interleave_layers__mha_block__glu_gated_geglu__prompt.s.ref')).read()
    head = []
    for ln in ref.split('\n'):
        if ln.startswith('; @launch'):
            break
        head.append(ln)
    out = head[:]
    for (n, g, b, lds) in launches:
        out.append('; @launch kernel=%s grid=(%d,1,1) block=(%d,1,1) lds=%d' % (n, g, b, lds))
    out.append('.amdgcn_target "amdgcn-amd-amdhsa--gfx950"')
    out.append('.text')
    descs = []
    for (k, nv, na) in kerns:
        body, desc = finish(k, nv, na)
        out.append(body)
        descs.append(desc)
        print('%-16s vgpr %3d agpr %3d lines %d' % (k.name, nv, na, len(k.lines)), file=sys.stderr)
    out.append('.section .rodata,"a"')
    for d in descs:
        out.append('.p2align 6')
        out.append(d)
    txt = '\n'.join(out) + '\n'
    fl = os.environ.get('STFLAG')
    if fl:
        import re
        txt = re.sub(r'(buffer_store_dword\w* [^\n]*)', lambda m: m.group(1) + ' ' + fl, txt)
    return txt


if __name__ == '__main__':
    dst = sys.argv[1] if len(sys.argv) > 1 else os.path.join(
        os.path.dirname(os.path.abspath(__file__)), '..', 'cdna_kernels',
        'interleave_layers__mha_block__glu_gated_geglu__prompt.s')
    open(dst, 'w').write(build())
```

```python
from common import *
from gemm import fbits, PTR, QSCALE, Ctx


import os
STAMP = os.environ.get('STAMP')


def gemm32_kernel(name, *, K, NB, mtiles, ntiles, xsrc, XS, wsrcs, WS, N, epi, cs_base, dst=None, proto=1,
                  xcdmap=False, extra=None):
    k = Kern(name)
    nst = [0]

    def stamp():
        if STAMP:
            k('s_memtime s[%d:%d]' % (84 + 2 * nst[0], 85 + 2 * nst[0]))
            nst[0] += 1
    c = Ctx()
    TM = TN = 128
    nmat = len(wsrcs)
    S = K // 64
    XB = TM * 128
    WB = 64 * 256
    STAGE = XB + nmat * WB
    SB = 2048
    AUX = 0
    LDS = SB + NB * STAGE
    NWG = mtiles * ntiles
    DPW = 4 + 4 * nmat
    c.__dict__.update(locals())

    if xcdmap:
        NWG = 256
    L_end = k.newlabel('end')
    k('s_cmp_ge_u32 s2, %d' % NWG)
    k('s_cbranch_scc1 %s' % L_end)
    stamp()
    k('s_load_dwordx16 s[64:79], s[0:1], 0')
    k('s_load_dwordx4 s[80:83], s[0:1], 64')
    if xcdmap:
        NWG = 256
        k('s_and_b32 s3, s2, 1')
        k('s_lshl_b32 s3, s3, 3')
        k('s_bfe_u32 s4, s2, 0x30003')
        k('s_add_u32 s3, s3, s4')
        k('s_lshr_b32 s5, s2, 6')
        k('s_bfe_u32 s6, s2, 0x20001')
        k('s_lshl_b32 s4, s6, 2')
        k('s_cmp_eq_u32 s6, 3')
        k('s_cselect_b32 s7, 1, 0')
        k('s_sub_u32 s4, s4, s7')
        k('s_add_u32 s4, s4, s5')
        k('s_cmp_ge_u32 s6, 2')
        k('s_cselect_b32 s7, 3, 4')
        k('s_cmp_ge_u32 s5, s7')
        k('s_cbranch_scc1 %s' % L_end)
    else:
        k('s_and_b32 s3, s2, %d' % (mtiles - 1))
        k('s_lshr_b32 s4, s2, %d' % (mtiles.bit_length() - 1))
    if os.environ.get('FORCE0'):
        k('s_mov_b32 s3, 0')
        k('s_mov_b32 s4, 0')
    va = VAlloc(1)
    vl = va.get()
    k('v_and_b32 v%d, 63, v0' % vl)
    k('v_lshrrev_b32 v2, 6, v0')
    va.get()
    k('s_nop 0')
    k('v_readfirstlane_b32 s5, v2')
    k('s_lshr_b32 s62, s5, 2')
    k('s_and_b32 s5, s5, 3')
    k('s_mul_i32 s56, s3, %d' % TM)
    k('s_mul_i32 s57, s4, %d' % TN)
    k('s_lshr_b32 s6, s5, 1')
    k('s_and_b32 s7, s5, 1')
    ta = va.get()
    tb_ = va.get()
    vxd = [va.get(), va.get()]
    vwd = va.get()
    k('s_mov_b32 s58, %d' % XS)
    for par in range(2):
        k('v_lshrrev_b32 v%d, 4, v%d' % (ta, vl))
        if par:
            k('v_add_u32 v%d, 4, v%d' % (ta, ta))
        k('v_xor_b32 v%d, v%d, v%d' % (ta, ta, vl))
        k('v_and_b32 v%d, 7, v%d' % (ta, ta))
        k('v_lshrrev_b32 v%d, 3, v%d' % (tb_, vl))
        k('v_add_u32 v%d, s56, v%d' % (tb_, tb_))
        k('v_mul_lo_u32 v%d, v%d, s58' % (vxd[par], tb_))
        k('v_lshl_add_u32 v%d, v%d, 4, v%d' % (vxd[par], ta, vxd[par]))
    k('v_lshrrev_b32 v%d, 4, v%d' % (ta, vl))
    k('v_lshlrev_b32 v%d, 2, v%d' % (tb_, ta))
    k('v_xor_b32 v%d, v%d, v%d' % (tb_, tb_, vl))
    k('v_and_b32 v%d, 15, v%d' % (tb_, tb_))
    k('v_mul_u32_u24 v%d, %d, v%d' % (vwd, WS, ta))
    k('v_lshl_add_u32 v%d, v%d, 4, v%d' % (vwd, tb_, vwd))
    k('s_lshl_b32 s58, s57, 1')
    k('v_add_u32 v%d, s58, v%d' % (vwd, vwd))
    k('s_lshl_b32 s52, s5, 12')
    k('s_mul_i32 s48, s5, %d' % (32 * XS))
    k('s_mul_i32 s49, s5, %d' % (16 * WS))
    k('s_mov_b32 s50, %d' % SB)
    k('s_mov_b32 s51, %d' % SB)
    k('s_waitcnt lgkmcnt(0)')
    if os.environ.get('FINE'):
        k('s_memtime s[86:87]')

    def srd_of(sd, src):
        if src[0] == 'ptr':
            mk_srd(k, sd, PTR(src[1]), 0, KSIZE[src[1]])
        else:
            mk_srd(k, sd, PTR('ws'), src[1], src[2])
    srd_of(8, xsrc)
    for m, w in enumerate(wsrcs):
        mk_srd(k, 12 + 4 * m, PTR(w), 0, KSIZE[w])

    def dma_q(qi):
        ops = []
        g = ['s_add_u32 s53, s50, s52',
             's_add_u32 m0, s53, %d' % (qi * 1024),
             's_add_u32 s54, s48, %d' % (qi * 8 * XS),
             'buffer_load_dwordx4 v%d, s[8:11], s54 offen lds' % vxd[qi & 1]]
        ops.append(g)
        for m in range(nmat):
            g = ['s_add_u32 m0, s53, %d' % (XB + m * WB + qi * 1024),
                 's_add_u32 s54, s49, %d' % (qi * 4 * WS),
                 'buffer_load_dwordx4 v%d, s[%d:%d], s54 offen lds' % (vwd, 12 + 4 * m, 15 + 4 * m)]
            ops.append(g)
        if qi == 3:
            ops.append(['s_add_u32 s48, s48, 128', 's_add_u32 s49, s49, %d' % (64 * WS),
                        's_add_u32 s50, s50, %d' % STAGE, 's_cmp_eq_u32 s50, %d' % (SB + NB * STAGE),
                        's_cselect_b32 s50, %d, s50' % SB])
        return ops

    L_comp = k.newlabel('comp')
    k('s_cmp_eq_u32 s62, 0')
    k('s_cbranch_scc1 %s' % L_comp)
    for s in range(NB - 1):
        for qi in range(4):
            emit_list(k, dma_q(qi))
    lv = VAlloc(16)
    lxs, lws, lxa, lwa = lv.get(), lv.get(), lv.get(), lv.get()
    lone, llo, lhi = lv.get(), lv.get(), lv.get()
    lsx = lv.get(4, 2)
    lu = lv.get(8, 2)
    lcs = lv.get(8 * nmat, 4)
    lxr = lv.get(16, 4)
    lwr = lv.get(16 * nmat, 4)
    lt = lv.get(4)

    def process():
        pass

    if proto == 2:
        for qi in range(4):
            emit_list(k, dma_q(qi))
        k('s_waitcnt vmcnt(%d)' % ((NB - 1) * DPW))
        k('s_barrier')
        process()
        k('s_waitcnt vmcnt(%d)' % ((NB - 2) * DPW))
        k('s_barrier')
        process()
        nl = S - NB
        if nl:
            k('s_mov_b32 s55, %d' % nl)
            Lld = k.newlabel('ld')
            k.label(Lld)
            k('s_barrier')
            for qi in range(4):
                emit_list(k, dma_q(qi))
            k('s_waitcnt vmcnt(%d)' % ((NB - 2) * DPW))
            k('s_barrier')
            process()
            k('s_sub_u32 s55, s55, 1')
            k('s_cmp_lg_u32 s55, 0')
            k('s_cbranch_scc1 %s' % Lld)
        for st in range(nl + 1, S - 1):
            k('s_barrier')
            k('s_waitcnt vmcnt(%d)' % (max(0, S - 1 - (st + 1)) * DPW))
            k('s_barrier')
            process()
    else:
        k('s_waitcnt vmcnt(%d)' % ((NB - 2) * DPW))
        k('s_barrier')
        process()
        nl = S - NB + 1
        k('s_mov_b32 s55, %d' % nl)
        Lld = k.newlabel('ld')
        k.label(Lld)
        k('s_waitcnt vmcnt(%d)' % ((NB - 3) * DPW))
        k('s_barrier')
        for qi in range(4):
            emit_list(k, dma_q(qi))
        process()
        k('s_sub_u32 s55, s55, 1')
        k('s_cmp_lg_u32 s55, 0')
        k('s_cbranch_scc1 %s' % Lld)
        for j in range(nl + 1, S):
            k('s_waitcnt vmcnt(%d)' % (max(0, S - 1 - j) * DPW))
            k('s_barrier')
            process()
    if extra is not None:
        extra(k, lv, vl)
    k('s_endpgm')
    k.label(L_comp)

    mk_srd(k, 20, PTR('ws'), 0, 0x100000)
    if dst is not None:
        srd_of(24, dst)
    vt = va.get(16, 4)
    vcs = va.get()
    vta = va.get()
    k('v_add_u32 v%d, s56, v0' % vta)
    k('v_lshlrev_b32 v%d, 6, v%d' % (vta, vta))
    k('v_add_u32 v%d, 0x%x, v%d' % (vta, ST_OFF, vta))
    for i in range(4):
        k('buffer_load_dwordx4 %s, v%d, s[20:23], 0 offen offset:%d' % (vr(vt + 4 * i, 4), vta, 16 * i))
    vci = va.get()
    k('v_add_u32 v%d, s57, v0' % vci)
    if nmat == 2:
        k('v_mov_b32 v%d, %d' % (vcs, cs_base[0]))
        k('v_mov_b32 v%d, %d' % (vta, cs_base[1] - TN))
        k('v_cmp_gt_u32 vcc, %d, v0' % TN)
        k('s_nop 1')
        k('v_cndmask_b32 v%d, v%d, v%d, vcc' % (vcs, vta, vcs))
        k('v_add_u32 v%d, v%d, v%d' % (vci, vci, vcs))
    elif cs_base[0]:
        k('v_add_u32 v%d, %d, v%d' % (vci, cs_base[0], vci))
    k('v_lshlrev_b32 v%d, 2, v%d' % (vci, vci))
    k('buffer_load_dword v%d, v%d, s[20:23], 0 offen' % (vcs, vci))

    vxr = [va.get() for _ in range(4)]
    vwr = [va.get() for _ in range(2)]
    vxa = [va.get() for _ in range(4)]
    vwa = [va.get() for _ in range(2)]
    vh = va.get()
    vt31 = va.get()
    k('v_lshrrev_b32 v%d, 5, v%d' % (vh, vl))
    k('v_and_b32 v%d, 31, v%d' % (vt31, vl))
    k('s_lshl_b32 s58, s6, 13')
    for s in range(4):
        k('v_bfe_u32 v%d, v%d, 1, 3' % (ta, vt31))
        k('v_add_u32 v%d, %d, v%d' % (tb_, 2 * s, vh))
        k('v_xor_b32 v%d, v%d, v%d' % (ta, ta, tb_))
        k('v_lshlrev_b32 v%d, 7, v%d' % (tb_, vt31))
        k('v_lshl_add_u32 v%d, v%d, 4, v%d' % (vxr[s], ta, tb_))
        k('v_add_u32 v%d, s58, v%d' % (vxr[s], vxr[s]))
    vrr = va.get()
    k('v_bfe_u32 v%d, v%d, 2, 2' % (vrr, vl))
    for nb in range(2):
        k('s_lshl_b32 s58, s7, 1')
        k('s_add_u32 s58, s58, %d' % nb)
        k('v_xor_b32 v%d, s58, v%d' % (ta, vrr))
        k('v_lshlrev_b32 v%d, 6, v%d' % (ta, ta))
        k('v_lshl_add_u32 v%d, v%d, 8, v%d' % (ta, vrr, ta))
        k('v_lshl_add_u32 v%d, v%d, 11, v%d' % (ta, vh, ta))
        k('v_and_b32 v%d, 1, v%d' % (tb_, vl))
        k('v_lshl_add_u32 v%d, v%d, 5, v%d' % (ta, tb_, ta))
        k('v_bfe_u32 v%d, v%d, 4, 1' % (tb_, vl))
        k('v_lshl_add_u32 v%d, v%d, 4, v%d' % (ta, tb_, ta))
        k('v_bfe_u32 v%d, v%d, 1, 1' % (tb_, vl))
        k('v_lshl_add_u32 v%d, v%d, 3, v%d' % (ta, tb_, ta))
        k('v_add_u32 v%d, %d, v%d' % (vwr[nb], XB, ta))

    xf = [[va.get(4, 4) for _ in range(2)] for _ in range(3)]
    wf = [[[va.get(4, 4) for _ in range(2)] for _ in range(nmat)] for _ in range(3)]
    nacc = nmat * 4 * 16
    accb = va.get(nacc, 4)
    acc = lambda m, nb, tb: accb + ((m * 2 + nb) * 2 + tb) * 16

    def aux_hook():
        k('s_waitcnt vmcnt(0)')
        for i in range(1, 8):
            k('v_add_f32 v%d, v%d, v%d' % (vt, vt, vt + 2 * i))
            k('v_add_f32 v%d, v%d, v%d' % (vt + 1, vt + 1, vt + 2 * i + 1))
        k('v_mul_f32 v%d, %s, v%d' % (vt, fbits(1.0 / D), vt))
        k('v_mul_f32 v%d, %s, v%d' % (vt + 1, fbits(1.0 / D), vt + 1))
        k('v_fma_f32 v%d, -v%d, v%d, v%d' % (vt + 1, vt, vt, vt + 1))
        k('v_max_f32 v%d, 0, v%d' % (vt + 1, vt + 1))
        k('v_add_f32 v%d, %s, v%d' % (vt + 1, fbits(1e-5), vt + 1))
        k('v_rsq_f32 v%d, v%d' % (vt + 1, vt + 1))
        k('s_nop 0')
        k('v_mul_f32 v%d, v%d, v%d' % (vt, vt, vt + 1))
        k('v_sub_f32 v%d, 0, v%d' % (vt, vt))
        k('v_lshlrev_b32 v%d, 3, v0' % ta)
        L1 = k.newlabel('aux')
        k('v_cmp_gt_u32 vcc, %d, v0' % TM)
        k('s_and_saveexec_b64 s[60:61], vcc')
        k('s_cbranch_execz %s' % L1)
        k('ds_write_b64 v%d, %s offset:%d' % (ta, vr(vt, 2), AUX))
        k.label(L1)
        k('s_mov_b64 exec, s[60:61]')
        L2 = k.newlabel('aux')
        k('v_lshlrev_b32 v%d, 2, v0' % ta)
        k('v_cmp_gt_u32 vcc, %d, v0' % (nmat * TN))
        k('s_and_saveexec_b64 s[60:61], vcc')
        k('s_cbranch_execz %s' % L2)
        k('ds_write_b32 v%d, v%d offset:%d' % (ta, vcs, AUX + TM * 8))
        k.label(L2)
        k('s_mov_b64 exec, s[60:61]')

    c.__dict__.update(locals())

    def read_ops(st, s):
        ops = []
        for tb in range(2):
            ops.append('ds_read_b128 %s, v%d offset:%d' % (vr(xf[st][tb], 4), vxa[s], tb * 4096))
        for m in range(nmat):
            for nb in range(2):
                for i in range(2):
                    ops.append('ds_read_b64_tr_b16 %s, v%d offset:%d' % (
                        vr(wf[st][m][nb] + 2 * i, 2), vwa[nb], m * WB + (16 * s + 4 * i) * 256))
        return ops

    def addr_ops():
        ops = ['v_add_u32 v%d, s51, v%d' % (vxa[s], vxr[s]) for s in range(4)]
        ops += ['v_add_u32 v%d, s51, v%d' % (vwa[nb], vwr[nb]) for nb in range(2)]
        ops += ['s_add_u32 s51, s51, %d' % STAGE, 's_cmp_eq_u32 s51, %d' % (SB + NB * STAGE),
                's_cselect_b32 s51, %d, s51' % SB]
        return ops

    def mfma_ops(st, swap, zero=False):
        ops = []
        for m in range(nmat):
            for nb in range(2):
                for tb in range(2):
                    a, b = vr(wf[st][m][nb], 4), vr(xf[st][tb], 4)
                    if swap:
                        a, b = b, a
                    d = vr(acc(m, nb, tb), 16)
                    ops.append('v_mfma_f32_32x32x16_bf16 %s, %s, %s, %s' % (d, a, b, '0' if zero else d))
        return ops

    def iteration_old(swap, first, do_dma, vm):
        for s in range(4):
            if s == 0:
                k('s_waitcnt lgkmcnt(0)')
                k('s_barrier')
                emit_list(k, addr_ops())
            mem = read_ops(s & 1, s)
            if os.environ.get('NOREAD'):
                mem = mem[:int(os.environ['NOREAD'])] + ['s_nop 0', 's_nop 0']
            mf = [] if (first and s == 0) else mfma_ops((s + 1) & 1, swap)
            emit_list(k, mem[:2])
            emit_list(k, interleave(mf, mem[2:]))
            k('s_waitcnt lgkmcnt(0)')

    NR = 2 + 4 * nmat

    def substep(t, swap):
        T = 4 * S
        mem = []
        if proto == 2 and t % 4 == 0 and t >= 4 and t + 4 < T:
            k('s_barrier')
        if t + 2 < T:
            if (t + 2) % 4 == 0:
                k('s_barrier')
                emit_list(k, addr_ops())
            mem = read_ops((t + 2) % 3, (t + 2) % 4)
        mf = mfma_ops(t % 3, swap, zero=(t == 0))
        emit_list(k, mem[:2])
        emit_list(k, interleave(mf, mem[2:]))
        if t + 1 < T:
            k('s_waitcnt lgkmcnt(%d)' % (NR if t + 2 < T else 0))

    def main(swap):
        nst[0] = 1
        if not os.environ.get('FINE'):
            stamp()
        k('s_waitcnt lgkmcnt(0)')
        k('s_barrier')
        if os.environ.get('FINE'):
            k('s_memtime s[88:89]')
            nst[0] = 6
        emit_list(k, addr_ops())
        emit_list(k, read_ops(0, 0))
        emit_list(k, read_ops(1, 1))
        k('s_waitcnt lgkmcnt(%d)' % NR)
        for t in range(4):
            substep(t, swap)
        stamp()
        aux_hook()
        nloop = (S - 2) // 3
        if nloop:
            k('s_mov_b32 s55, %d' % nloop)
            lab = k.newlabel('loop')
            k.label(lab)
            for t in range(4, 16):
                substep(t, swap)
            k('s_sub_u32 s55, s55, 1')
            k('s_cmp_lg_u32 s55, 0')
            k('s_cbranch_scc1 %s' % lab)
        for t in range(4 + 12 * nloop, 4 * S):
            substep(t, swap)
        k('s_nop 7')
        k('s_nop 7')
        nst[0] = 3
        stamp()

    c.main = main
    epi(k, c)
    if STAMP:
        k('s_waitcnt vmcnt(0)')
        nst[0] = 4
        stamp()
        k('s_waitcnt lgkmcnt(0)')
        Ls = k.newlabel('st')
        k('s_cmp_lg_u32 s2, %s' % STAMP)
        k('s_cbranch_scc1 %s' % Ls)
        k('s_cmp_lg_u32 s5, 0')
        k('s_cbranch_scc1 %s' % Ls)
        mk_srd(k, 8, PTR('dbg'), 0, 256)
        for i in range(1, 5):
            k('s_sub_u32 s%d, s%d, s84' % (84 + 2 * i, 84 + 2 * i))
            k('v_mov_b32 v1, s%d' % (84 + 2 * i))
            k('v_mov_b32 v2, 0')
            k('buffer_store_dword v1, v2, s[8:11], 0 offen offset:%d' % (4 * i))
        k.label(Ls)
    k.label(L_end)
    k('s_endpgm')
    return k, va.n, 0, LDS, NWG


def epi32_qkv(k, c):
    va = c.va
    vl, vh, vt31 = c.vl, c.vh, c.vt31
    L_v = k.newlabel('vpath')
    L_done = k.newlabel('qkvdone')
    mk_srd(k, 24, PTR('ws'), QF_OFF, 12 << 20)
    k('s_cmp_ge_u32 s4, 10')
    k('s_cbranch_scc1 %s' % L_v)
    big = va.get(64, 4)
    vst = big
    vto = big + 4
    vno = big + 8
    vcsr = big + 16
    vp = big + 48
    vx = big + 56
    k('s_lshl_b32 s58, s4, 5')
    k('s_lshl_b32 s60, s7, 4')
    k('s_add_u32 s58, s58, s60')
    k('s_cmp_lt_u32 s4, 5')
    k('s_cselect_b32 s61, 0, 160')
    k('s_cselect_b32 s60, 0, 0x400000')
    k('s_sub_u32 s58, s58, s61')
    k('s_mov_b32 s61, 52429')
    for nb in range(2):
        for j in range(4):
            o = vno + 4 * nb + j
            k('v_lshl_add_u32 v%d, v%d, 2, s58' % (vx + 1, vh))
            k('v_add_u32 v%d, %d, v%d' % (vx + 1, nb * 8 + j, vx + 1))
            k('v_mul_lo_u32 v%d, v%d, s61' % (vx + 2, vx + 1))
            k('v_lshrrev_b32 v%d, 18, v%d' % (vx + 2, vx + 2))
            k('v_mul_u32_u24 v%d, 5, v%d' % (vx + 3, vx + 2))
            k('v_sub_u32 v%d, v%d, v%d' % (vx + 3, vx + 1, vx + 3))
            k('v_lshlrev_b32 v%d, 17, v%d' % (o, vx + 2))
            k('v_lshrrev_b32 v%d, 2, v%d' % (vx + 1, vx + 3))
            k('v_lshl_add_u32 v%d, v%d, 10, v%d' % (o, vx + 1, o))
            k('v_bfe_u32 v%d, v%d, 1, 1' % (vx + 1, vx + 3))
            k('v_lshl_add_u32 v%d, v%d, 9, v%d' % (o, vx + 1, o))
            k('v_and_b32 v%d, 1, v%d' % (vx + 1, vx + 3))
            k('v_lshl_add_u32 v%d, v%d, 3, v%d' % (o, vx + 1, o))
            k('v_add_u32 v%d, s60, v%d' % (o, o))
    k('s_lshl_b32 s58, s3, 2')
    k('s_lshl_b32 s60, s6, 1')
    k('s_add_u32 s58, s58, s60')
    k('s_lshl_b32 s58, s58, 11')
    k('v_lshlrev_b32 v%d, 4, v%d' % (vto, vt31))
    k('v_add_u32 v%d, s58, v%d' % (vto, vto))
    for nb in range(2):
        for j in range(4):
            k('v_add_u32 v%d, v%d, v%d' % (vno + 4 * nb + j, vno + 4 * nb + j, vto))
    c.main(False)
    k('s_cmp_lt_u32 s4, 5')
    k('s_cselect_b32 s59, %s, 1.0' % fbits(QSCALE))
    k('s_lshl_b32 s58, s6, 9')
    k('v_lshlrev_b32 v%d, 3, v%d' % (vx, vt31))
    k('v_add_u32 v%d, s58, v%d' % (vx, vx))
    for tb in range(2):
        k('ds_read_b64 %s, v%d offset:%d' % (vr(vst + 2 * tb, 2), vx, c.AUX + tb * 256))
    k('s_lshl_b32 s58, s7, 8')
    k('v_lshlrev_b32 v%d, 6, v%d' % (vx + 1, vh))
    k('v_add_u32 v%d, s58, v%d' % (vx + 1, vx + 1))
    for nb in range(2):
        for j in range(4):
            k('ds_read_b128 %s, v%d offset:%d' % (vr(vcsr + 16 * nb + 4 * j, 4), vx + 1,
                                                   c.AUX + c.TM * 8 + nb * 128 + j * 16))
    k('s_waitcnt lgkmcnt(0)')
    for tb in range(2):
        k('v_mul_f32 v%d, s59, v%d' % (vst + 2 * tb, vst + 2 * tb))
        k('v_mul_f32 v%d, s59, v%d' % (vst + 2 * tb + 1, vst + 2 * tb + 1))
    vkm = vx + 3
    k('v_mov_b32 v%d, 0' % vkm)
    for tb in range(2):
        for nb in range(2):
            a = c.acc(0, nb, tb)
            for j in range(4):
                q = vp + 4 * (j & 1)
                P = lambda r: 'v[%d:%d]' % (r, r + 1)
                st_ = P(vst + 2 * tb)
                for i in range(0, 4, 2):
                    k('v_pk_mul_f32 %s, %s, %s op_sel:[0,1] op_sel_hi:[1,1]' % (P(q + i), P(a + 4 * j + i), st_))
                for i in range(0, 4, 2):
                    k('v_pk_fma_f32 %s, %s, %s, %s op_sel_hi:[1,0,1]' % (
                        P(q + i), P(vcsr + 16 * nb + 4 * j + i), st_, P(q + i)))
                k('v_max3_f32 v%d, abs(v%d), abs(v%d), v%d' % (vkm, q, q + 1, vkm))
                k('v_max3_f32 v%d, abs(v%d), abs(v%d), v%d' % (vkm, q + 2, q + 3, vkm))
                k('v_cvt_pk_bf16_f32 v%d, v%d, v%d' % (q, q, q + 1))
                k('v_cvt_pk_bf16_f32 v%d, v%d, v%d' % (q + 1, q + 2, q + 3))
                k('buffer_store_dwordx2 %s, v%d, s[24:27], 0 offen offset:%d' % (vr(q, 2), vno + 4 * nb + j, tb * 2048))
    k('s_cmp_lt_u32 s4, 5')
    k('s_cbranch_scc1 %s' % L_done)
    for sh in (1, 2, 4, 8, 16, 32):
        k('v_xor_b32 v%d, %d, v%d' % (vx, sh, vl))
        k('v_lshlrev_b32 v%d, 2, v%d' % (vx, vx))
        k('ds_bpermute_b32 v%d, v%d, v%d' % (vx + 1, vx, vkm))
        k('s_waitcnt lgkmcnt(0)')
        k('v_max_f32 v%d, v%d, v%d' % (vkm, vkm, vx + 1))
    k('s_sub_u32 s58, s2, 80')
    k('s_lshl_b32 s58, s58, 2')
    k('s_add_u32 s58, s58, s5')
    k('s_lshl_b32 s58, s58, 2')
    k('s_add_u32 s58, s58, 0x%x' % KM_OFF)
    k('v_mov_b32 v%d, s58' % vx)
    k('buffer_store_dword v%d, v%d, s[20:23], 0 offen' % (vkm, vx))
    k('s_branch %s' % L_done)

    k.label(L_v)
    vst2 = big
    vcs2 = big + 32
    vno2 = big + 34
    vy = big + 36
    vx = big + 56
    k('v_bfe_u32 v%d, v%d, 2, 1' % (vx, vl))
    k('v_lshlrev_b32 v%d, 4, v%d' % (vx, vx))
    k('v_bfe_u32 v%d, v%d, 3, 2' % (vx + 1, vl))
    k('v_lshl_add_u32 v%d, v%d, 2, v%d' % (vx, vx + 1, vx))
    k('v_and_b32 v%d, 3, v%d' % (vx + 1, vl))
    k('v_add_u32 v%d, v%d, v%d' % (vx, vx, vx + 1))
    k('s_lshl_b32 s58, s7, 6')
    k('v_add_u32 v%d, s58, v%d' % (vx, vx))
    k('s_sub_u32 s58, s57, 1280')
    k('s_movk_i32 s61, 3277')
    for nb in range(2):
        o = vno2 + nb
        k('v_add_u32 v%d, s58, v%d' % (vx + 2, vx))
        if nb:
            k('v_add_u32 v%d, 32, v%d' % (vx + 2, vx + 2))
        k('v_mul_lo_u32 v%d, v%d, s61' % (vx + 3, vx + 2))
        k('v_lshrrev_b32 v%d, 16, v%d' % (vx + 3, vx + 3))
        k('v_mul_u32_u24 v%d, 20, v%d' % (o, vx + 3))
        k('v_sub_u32 v%d, v%d, v%d' % (o, vx + 2, o))
        k('v_lshlrev_b32 v%d, 4, v%d' % (o, o))
        k('v_lshl_add_u32 v%d, v%d, 17, v%d' % (o, vx + 3, o))
        k('v_lshl_add_u32 v%d, v%d, 9, v%d' % (o, vh, o))
    k('s_lshl_b32 s58, s3, 2')
    k('s_lshl_b32 s60, s6, 1')
    k('s_add_u32 s58, s58, s60')
    k('s_lshl_b32 s58, s58, 11')
    k('s_add_u32 s58, s58, 0x%x' % (VF_OFF - QF_OFF))
    for nb in range(2):
        k('v_add_u32 v%d, s58, v%d' % (vno2 + nb, vno2 + nb))
    c.main(True)
    k('v_lshlrev_b32 v%d, 2, v%d' % (vx + 1, vx))
    for nb in range(2):
        k('ds_read_b32 v%d, v%d offset:%d' % (vcs2 + nb, vx + 1, c.AUX + c.TM * 8 + nb * 128))
    k('s_lshl_b32 s58, s6, 9')
    k('v_lshlrev_b32 v%d, 5, v%d' % (vx + 1, vh))
    k('v_add_u32 v%d, s58, v%d' % (vx + 1, vx + 1))
    for tb in range(2):
        for j in range(4):
            for hh in range(2):
                k('ds_read_b128 %s, v%d offset:%d' % (vr(vst2 + 8 * j + 4 * hh, 4), vx + 1,
                                                       c.AUX + tb * 256 + j * 64 + hh * 16))
        k('s_waitcnt lgkmcnt(0)')
        for nb in range(2):
            a = c.acc(0, nb, tb)
            for t in range(2):
                for r in range(8):
                    rr = 8 * t + r
                    k('v_mul_f32 v%d, v%d, v%d' % (vy + r, a + rr, vst2 + 2 * rr + 1))
                    k('v_fmac_f32 v%d, v%d, v%d' % (vy + r, vcs2 + nb, vst2 + 2 * rr))
                for i in range(4):
                    k('v_cvt_pk_bf16_f32 v%d, v%d, v%d' % (vy + i, vy + 2 * i, vy + 2 * i + 1))
                k('buffer_store_dwordx4 %s, v%d, s[24:27], 0 offen offset:%d' % (
                    vr(vy, 4), vno2 + nb, tb * 2048 + t * 1024))
                k('s_nop 1')
    k.label(L_done)


def epi32_geglu(k, c):
    va = c.va
    vl, vh, vt31 = c.vl, c.vh, c.vt31
    c.main(False)
    fb = c.xf[0][0]
    vcg = c.vt
    vcu = fb
    tg = fb + 16
    tu = fb + 24
    vst = fb + 32
    vx = fb + 36
    vo = fb + 40
    t2 = fb + 44
    vC = fb + 52
    k('s_lshl_b32 s58, s6, 9')
    k('v_lshlrev_b32 v%d, 3, v%d' % (vx, vt31))
    k('v_add_u32 v%d, s58, v%d' % (vx, vx))
    for tb in range(2):
        k('ds_read_b64 %s, v%d offset:%d' % (vr(vst + 2 * tb, 2), vx, c.AUX + tb * 256))
    k('s_lshl_b32 s58, s3, 1')
    k('s_add_u32 s58, s58, s6')
    k('s_mul_i32 s58, s58, 54')
    k('s_lshl_b32 s60, s4, 2')
    k('s_add_u32 s58, s58, s60')
    k('s_lshl_b32 s60, s7, 1')
    k('s_add_u32 s58, s58, s60')
    k('s_lshl_b32 s58, s58, 12')
    k('v_bfe_u32 v%d, v%d, 2, 2' % (vx + 1, vt31))
    k('v_sub_u32 v%d, 0, v%d' % (vx + 1, vx + 1))
    k('v_lshlrev_b32 v%d, 1, v%d' % (vx + 2, vh))
    k('v_xor_b32 v%d, v%d, v%d' % (vx + 1, vx + 1, vx + 2))
    k('v_and_b32 v%d, 3, v%d' % (vx + 1, vx + 1))
    k('v_lshlrev_b32 v%d, 6, v%d' % (vo, vt31))
    k('v_add_u32 v%d, s58, v%d' % (vo, vo))
    k('v_xor_b32 v%d, 1, v%d' % (vx + 2, vx + 1))
    k('v_lshl_add_u32 v%d, v%d, 4, v%d' % (vo + 1, vx + 2, vo))
    k('v_lshl_add_u32 v%d, v%d, 4, v%d' % (vo, vx + 1, vo))
    k('s_lshl_b32 s58, s7, 6')
    k('s_add_u32 s58, s58, s57')
    k('s_cmp_lt_u32 s58, %d' % c.N)
    k('s_cselect_b32 s58, 0, 0x7ff00000')
    k('v_add_u32 v%d, s58, v%d' % (vo, vo))
    k('v_add_u32 v%d, s58, v%d' % (vo + 1, vo + 1))
    C1 = -2.0 * 1.4426950408889634 * 0.7978845608028654
    C2 = C1 * 0.044715
    k('v_mov_b32 v%d, %s' % (vC, fbits(C1)))
    k('v_mov_b32 v%d, %s' % (vC + 1, fbits(C2)))
    k('v_mov_b32 v%d, 1.0' % (vC + 2))
    k('s_lshl_b32 s58, s7, 8')
    k('v_lshlrev_b32 v%d, 6, v%d' % (vx + 1, vh))
    k('v_add_u32 v%d, s58, v%d' % (vx + 1, vx + 1))
    for nb in range(2):
        for j in range(4):
            k('ds_read_b128 %s, v%d offset:%d' % (vr(vcg + 4 * j, 4), vx + 1, c.AUX + c.TM * 8 + nb * 128 + j * 16))
            k('ds_read_b128 %s, v%d offset:%d' % (vr(vcu + 4 * j, 4), vx + 1,
                                                   c.AUX + c.TM * 8 + c.TN * 4 + nb * 128 + j * 16))
        k('s_waitcnt lgkmcnt(0)')
        for tb in range(2):
            ag = c.acc(0, nb, tb)
            au = c.acc(1, nb, tb)
            for half in range(2):
                P = lambda r: 'v[%d:%d]' % (r, r + 1)
                st_ = P(vst + 2 * tb)
                for i in range(0, 8, 2):
                    r = 8 * half + i
                    k('v_pk_mul_f32 %s, %s, %s op_sel:[0,1] op_sel_hi:[1,1]' % (P(tg + i), P(ag + r), st_))
                    k('v_pk_mul_f32 %s, %s, %s op_sel:[0,1] op_sel_hi:[1,1]' % (P(tu + i), P(au + r), st_))
                    k('v_pk_fma_f32 %s, %s, %s, %s op_sel_hi:[1,0,1]' % (P(tg + i), P(vcg + r), st_, P(tg + i)))
                    k('v_pk_fma_f32 %s, %s, %s, %s op_sel_hi:[1,0,1]' % (P(tu + i), P(vcu + r), st_, P(tu + i)))
                for i in range(0, 8, 2):
                    k('v_pk_mul_f32 %s, %s, %s' % (P(t2 + i), P(tg + i), P(tg + i)))
                    k('v_pk_mul_f32 %s, %s, %s' % (P(tu + i), P(tu + i), P(tg + i)))
                    k('v_pk_fma_f32 %s, %s, %s, %s op_sel:[0,1,0] op_sel_hi:[1,1,0]' % (P(t2 + i), P(t2 + i), P(vC), P(vC)))
                    k('v_pk_mul_f32 %s, %s, %s' % (P(t2 + i), P(t2 + i), P(tg + i)))
                for i in range(8):
                    k('v_exp_f32 v%d, v%d' % (t2 + i, t2 + i))
                k('s_nop 0')
                for i in range(0, 8, 2):
                    k('v_pk_add_f32 %s, %s, %s op_sel_hi:[1,0]' % (P(t2 + i), P(t2 + i), P(vC + 2)))
                for i in range(8):
                    k('v_rcp_f32 v%d, v%d' % (t2 + i, t2 + i))
                k('s_nop 0')
                for i in range(0, 8, 2):
                    k('v_pk_mul_f32 %s, %s, %s' % (P(tg + i), P(tu + i), P(t2 + i)))
                for i in range(4):
                    k('v_cvt_pk_bf16_f32 v%d, v%d, v%d' % (tu + i, tg + 2 * i, tg + 2 * i + 1))
                if nb:
                    k('s_movk_i32 s61, 4096')
                k('buffer_store_dwordx4 %s, v%d, s[24:27], %s offen offset:%d' % (
                    vr(tu, 4), vo + half, 's61' if nb else '0', tb * 2048))
                k('s_nop 1')


def qkv_extra(k, lv, vl):
    t = lv.get(8, 4)
    z = lv.get(4, 4)
    d = lv.get(4, 4)
    for i in range(4):
        k('v_mov_b32 v%d, 0' % (z + i))
    k('s_lshl_b32 s58, s2, 2')
    k('s_add_u32 s58, s58, s5')
    mk_srd(k, 24, PTR('ws'), QF_OFF, 12 << 20)
    k('v_lshlrev_b32 v%d, 4, v%d' % (t, vl))
    k('v_mov_b32 v%d, 0x7ffffff0' % (t + 2))
    k('v_cmp_lt_u32 vcc, 31, v%d' % vl)
    k('s_nop 1')
    k('v_cndmask_b32 v%d, v%d, v%d, vcc' % (t + 1, t + 2, t))
    k('v_and_b32 v%d, 31, v%d' % (t + 3, vl))
    k('v_cmp_lt_u32 vcc, 19, v%d' % (t + 3))
    k('s_nop 1')
    k('v_cndmask_b32 v%d, v%d, v%d, vcc' % (t + 4, t + 2, t))
    k('v_mov_b32 v%d, 0x3f803f80' % (t + 5))
    k('v_cmp_eq_u32 vcc, 20, v%d' % (t + 3))
    k('s_nop 1')
    k('v_cndmask_b32 v%d, v%d, v%d, vcc' % (d, z, t + 5))
    for i in range(1, 4):
        k('v_mov_b32 v%d, v%d' % (d + i, d))
    for it in range(5):
        L = k.newlabel('ex')
        k('s_add_u32 s59, s58, %d' % (960 * it))
        k('s_cmp_ge_u32 s59, 4096')
        k('s_cbranch_scc1 %s' % L)
        k('s_lshl_b32 s60, s59, 11')
        k('buffer_store_dwordx2 %s, v%d, s[24:27], s60 offen offset:1032' % (vr(z, 2), t))
        k('buffer_store_dwordx2 %s, v%d, s[24:27], s60 offen offset:1024' % (vr(z, 2), t + 1))
        k('s_lshl_b32 s60, s59, 10')
        k('s_add_u32 s60, s60, 0x800000')
        k('buffer_store_dwordx4 %s, v%d, s[24:27], s60 offen' % (vr(d, 4), t + 4))
        k.label(L)
    for (ptr, off, K, nch, first) in (('A_wo', WOP_OFF, 640, 800, 0), ('w_down', WDP_OFF, 1728, 2160, 800)):
        mk_srd(k, 28, PTR(ptr), 0, KSIZE[ptr])
        mk_srd(k, 32, PTR('ws'), off, KSIZE[ptr])
        for it in range(4):
            lo, hi = 960 * it, 960 * it + 960
            if hi <= first or lo >= first + nch:
                continue
            L = k.newlabel('pk')
            k('s_add_u32 s59, s58, %d' % (960 * it))
            k('s_sub_u32 s59, s59, %d' % first)
            k('s_cmp_ge_u32 s59, %d' % nch)
            k('s_cbranch_scc1 %s' % L)
            k('s_lshl_b32 s59, s59, 6')
            k('v_add_u32 v%d, s59, v%d' % (t, vl))
            k('v_lshlrev_b32 v%d, 4, v%d' % (t + 1, t))
            k('buffer_load_dwordx4 %s, v%d, s[28:31], 0 offen' % (vr(d, 4), t + 1))
            k('s_mov_b32 s60, 52429')
            k('v_mul_lo_u32 v%d, v%d, s60' % (t + 1, t))
            k('v_mul_hi_u32 v%d, v%d, s60' % (t + 2, t))
            k('v_lshrrev_b32 v%d, 22, v%d' % (t + 1, t + 1))
            k('v_lshl_or_b32 v%d, v%d, 10, v%d' % (t + 1, t + 2, t + 1))
            k('v_mul_u32_u24 v%d, 80, v%d' % (t + 2, t + 1))
            k('v_sub_u32 v%d, v%d, v%d' % (t + 2, t, t + 2))
            k('s_movk_i32 s60, 6554')
            k('v_mul_lo_u32 v%d, v%d, s60' % (t + 3, t + 2))
            k('v_lshrrev_b32 v%d, 16, v%d' % (t + 3, t + 3))
            k('v_mul_u32_u24 v%d, 10, v%d' % (t + 4, t + 3))
            k('v_sub_u32 v%d, v%d, v%d' % (t + 4, t + 2, t + 4))
            k('v_mul_u32_u24 v%d, %d, v%d' % (t + 3, K, t + 3))
            k('v_add_u32 v%d, v%d, v%d' % (t + 3, t + 3, t + 1))
            k('v_mul_u32_u24 v%d, 160, v%d' % (t + 3, t + 3))
            k('v_lshl_add_u32 v%d, v%d, 4, v%d' % (t + 3, t + 4, t + 3))
            k('s_waitcnt vmcnt(0)')
            k('buffer_store_dwordx4 %s, v%d, s[32:35], 0 offen' % (vr(d, 4), t + 3))
            k('s_nop 1')
            k.label(L)
```

```python
from common import *
from gemm import fbits, PTR, Ctx
import os
STAMP = os.environ.get('STAMP')


def gemmsk_kernel(name, *, K, NB, xsrc, XS, wsrc, resid, dst, want_stats=True):
    k = Kern(name)
    TM, TN, N, WS = 64, 80, 640, 1280
    mtiles, ntiles = 32, 8
    NWG = mtiles * ntiles
    S = K // 32
    base, rem = S // 4, S % 4
    XB = 4096
    WB = 5120
    STAGE = XB + WB
    WV = NB * STAGE
    LDS = max(4 * WV, 4 * 20480)
    DPW = 9
    nnb, ntb, npair = 5, 4, 3

    L_end = k.newlabel('end')
    k('s_cmp_ge_u32 s2, %d' % NWG)
    k('s_cbranch_scc1 %s' % L_end)
    if STAMP:
        k('s_memtime s[84:85]')
        k('s_memrealtime s[94:95]')
    k('s_load_dwordx16 s[64:79], s[0:1], 0')
    k('s_load_dwordx4 s[80:83], s[0:1], 64')
    k('s_and_b32 s3, s2, %d' % (mtiles - 1))
    k('s_lshr_b32 s4, s2, 5')
    va = VAlloc(1)
    vl = va.get()
    k('v_and_b32 v%d, 63, v0' % vl)
    k('v_lshrrev_b32 v2, 6, v0')
    va.get()
    k('s_nop 0')
    k('v_readfirstlane_b32 s5, v2')
    k('s_lshl_b32 s56, s3, 6')
    k('s_mul_i32 s57, s4, %d' % TN)
    k('s_min_u32 s58, s5, %d' % rem)
    k('s_mul_i32 s59, s5, %d' % base)
    k('s_add_u32 s59, s59, s58')
    k('s_cmp_lt_u32 s5, %d' % rem)
    k('s_cselect_b32 s55, %d, %d' % (base + 1, base))
    ta = va.get()
    tb_ = va.get()
    vxd = va.get()
    vwd = va.get()
    k('v_lshlrev_b32 v%d, 4, v%d' % (vxd, vl))
    k('s_mul_i32 s48, s3, %d' % S)
    k('s_add_u32 s48, s48, s59')
    k('s_lshl_b32 s48, s48, 12')
    k('s_mul_i32 s49, s4, %d' % K)
    k('s_lshl_b32 s58, s59, 5')
    k('s_add_u32 s49, s49, s58')
    k('s_mul_i32 s49, s49, 160')
    k('s_mul_i32 s52, s5, %d' % WV)
    k('s_add_u32 s53, s52, %d' % WV)
    k('s_mov_b32 s50, s52')
    k('s_mov_b32 s51, s52')
    k('s_waitcnt lgkmcnt(0)')

    def srd_of(sd, src):
        if src[0] == 'ptr':
            mk_srd(k, sd, PTR(src[1]), 0, KSIZE[src[1]])
        else:
            mk_srd(k, sd, PTR('ws'), src[1], src[2])
    srd_of(8, xsrc)
    mk_srd(k, 12, PTR('ws'), wsrc, K * 1280)

    def dma_ops():
        ops = [['s_mov_b32 m0, s50', 's_nop 0', 'buffer_load_dwordx4 v%d, s[8:11], s48 offen lds' % vxd]]
        for j in range(1, 4):
            ops.append('buffer_load_dwordx4 v%d, s[8:11], s48 offen offset:%d lds' % (vxd, j * 1024))
        ops.append(['s_add_u32 m0, s50, %d' % XB, 's_nop 0', 'buffer_load_dwordx4 v%d, s[12:15], s49 offen lds' % vxd])
        for q in range(1, 4):
            ops.append('buffer_load_dwordx4 v%d, s[12:15], s49 offen offset:%d lds' % (vxd, q * 1024))
        ops.append(['s_add_u32 m0, s50, %d' % (XB + 4096), 's_add_u32 s54, s49, 4096',
                    'buffer_load_dwordx4 v%d, s[12:15], s54 offen lds' % vxd])
        ops.append(['s_add_u32 s48, s48, 4096', 's_add_u32 s49, s49, 5120',
                    's_add_u32 s50, s50, %d' % STAGE, 's_cmp_eq_u32 s50, s53', 's_cselect_b32 s50, s52, s50'])
        return ops

    assert base >= NB
    for s in range(NB):
        emit_list(k, dma_ops())

    srd_of(24, dst)
    srd_of(28, resid)
    mk_srd(k, 20, PTR('ws'), 0, 0x100000)
    vg = va.get()
    k('v_lshrrev_b32 v%d, 4, v%d' % (vg, vl))
    vres = va.get(npair * 4, 4)
    vra = va.get()
    vrb = va.get()
    k('s_lshl_b32 s58, s5, 4')
    k('s_add_u32 s58, s58, s56')
    k('v_and_b32 v%d, 15, v%d' % (vra, vl))
    k('v_add_u32 v%d, s58, v%d' % (vra, vra))
    k('v_mul_u32_u24 v%d, %d, v%d' % (vra, N * 2, vra))
    k('v_lshl_add_u32 v%d, v%d, 4, v%d' % (vra, vg, vra))
    k('s_lshl_b32 s58, s57, 1')
    k('v_add_u32 v%d, s58, v%d' % (vra, vra))
    k('v_lshlrev_b32 v%d, 3, v%d' % (vrb, vg))
    k('v_sub_u32 v%d, v%d, v%d' % (vrb, vra, vrb))
    k('buffer_load_dwordx4 %s, v%d, s[28:31], 0 offen' % (vr(vres, 4), vra))
    k('buffer_load_dwordx4 %s, v%d, s[28:31], 0 offen offset:64' % (vr(vres + 4, 4), vra))
    k('buffer_load_dwordx2 %s, v%d, s[28:31], 0 offen offset:128' % (vr(vres + 8, 2), vrb))
    NRES = 3

    vxr = va.get()
    vwr = [va.get() for _ in range(npair)]
    vxa = va.get()
    vwa = [va.get() for _ in range(npair)]
    k('v_and_b32 v%d, 15, v%d' % (ta, vl))
    k('v_lshrrev_b32 v%d, 2, v%d' % (tb_, ta))
    k('v_sub_u32 v%d, 0, v%d' % (tb_, tb_))
    k('v_xor_b32 v%d, v%d, v%d' % (tb_, tb_, vg))
    k('v_and_b32 v%d, 3, v%d' % (tb_, tb_))
    k('v_lshlrev_b32 v%d, 6, v%d' % (vxr, ta))
    k('v_lshl_add_u32 v%d, v%d, 4, v%d' % (vxr, tb_, vxr))
    vrr = va.get()
    k('v_bfe_u32 v%d, v%d, 2, 2' % (vrr, vl))
    for p in range(npair):
        k('v_lshl_add_u32 v%d, v%d, 3, v%d' % (ta, vg, vrr))
        k('v_mul_u32_u24 v%d, 160, v%d' % (ta, ta))
        k('v_and_b32 v%d, 3, v%d' % (tb_, vl))
        k('v_lshl_add_u32 v%d, v%d, %d, v%d' % (ta, tb_, 4 if 2 * p + 1 < nnb else 3, ta))
        k('v_add_u32 v%d, %d, v%d' % (vwr[p], XB + p * 64, ta))

    xf = [[va.get(4, 4) for _ in range(ntb)] for _ in range(2)]
    wf = [[va.get(4, 4) for _ in range(nnb)] for _ in range(2)]
    accb = va.get(80, 4)
    acc = lambda nb, tb: accb + (tb * nnb + nb) * 4
    for i in range(80):
        k('v_mov_b32 v%d, 0' % (accb + i))

    def read_ops(st):
        ops = ['ds_read_b128 %s, v%d offset:%d' % (vr(xf[st][tb], 4), vxa, tb * 1024) for tb in range(ntb)]
        for nb in range(nnb):
            p, b = nb // 2, nb % 2
            for i in range(2):
                ops.append('ds_read_b64_tr_b16 %s, v%d offset:%d' % (vr(wf[st][nb] + 2 * i, 2), vwa[p], i * 640 + 8 * b))
        return ops

    def addr_ops():
        ops = ['v_add_u32 v%d, s51, v%d' % (vxa, vxr)]
        ops += ['v_add_u32 v%d, s51, v%d' % (vwa[p], vwr[p]) for p in range(npair)]
        ops += ['s_add_u32 s51, s51, %d' % STAGE, 's_cmp_eq_u32 s51, s53', 's_cselect_b32 s51, s52, s51']
        return ops

    def mfma_ops(st):
        return ['v_mfma_f32_16x16x32_bf16 %s, %s, %s, %s' % (vr(acc(nb, tb), 4), vr(wf[st][nb], 4), vr(xf[st][tb], 4),
                                                             vr(acc(nb, tb), 4))
                for nb in range(nnb) for tb in range(ntb)]

    k('s_waitcnt vmcnt(%d)' % ((NB - 1) * DPW + NRES))
    emit_list(k, addr_ops())
    emit_list(k, read_ops(0))
    k('s_waitcnt lgkmcnt(0)')
    if STAMP:
        k('s_memtime s[86:87]')
    first = [True]

    def step(st):
        Lt = k.newlabel('tail')
        Lj = k.newlabel('join')
        k('s_cmp_le_u32 s55, %d' % NB)
        k('s_cbranch_scc1 %s' % Lt)
        k('s_waitcnt vmcnt(%d)' % ((NB - 2) * DPW))
        emit_list(k, addr_ops())
        mem = ([] if os.environ.get('NOREAD') else read_ops(1 - st)) + ([] if os.environ.get('NODMA') else dma_ops()) + ['s_nop 0', 's_nop 0']
        if os.environ.get('DMAFIRST'):
            d_ = dma_ops()
            r_ = read_ops(1 - st)
            emit_list(k, d_)
            emit_list(k, r_[:2])
            emit_list(k, interleave(mfma_ops(st), r_[2:]))
        else:
            emit_list(k, mem[:2])
            emit_list(k, interleave(mfma_ops(st), mem[2:]))
        k('s_branch %s' % Lj)
        k.label(Lt)
        k('s_waitcnt vmcnt(0)')
        emit_list(k, addr_ops())
        mem = read_ops(1 - st)
        emit_list(k, mem[:2])
        emit_list(k, interleave(mfma_ops(st), mem[2:]))
        k.label(Lj)
        k('s_waitcnt lgkmcnt(0)')
        k('s_sub_u32 s55, s55, 1')
        k('s_cmp_eq_u32 s55, 1')

    Lloop = k.newlabel('loop')
    LlastB = k.newlabel('lastB')
    Ldone = k.newlabel('done')
    k.label(Lloop)
    step(0)
    k('s_cbranch_scc1 %s' % LlastB)
    step(1)
    k('s_cbranch_scc0 %s' % Lloop)
    emit_list(k, mfma_ops(0))
    k('s_branch %s' % Ldone)
    k.label(LlastB)
    emit_list(k, mfma_ops(1))
    k.label(Ldone)
    if STAMP:
        k('s_memtime s[88:89]')
    k('s_nop 7')
    k('s_barrier')
    vo16 = va.get()
    k('v_lshlrev_b32 v%d, 4, v%d' % (vo16, vl))
    k('s_mul_i32 s58, s5, 20480')
    k('v_add_u32 v%d, s58, v%d' % (ta, vo16))
    for tb in range(ntb):
        for nb in range(nnb):
            k('ds_write_b128 v%d, %s offset:%d' % (ta, vr(acc(nb, tb), 4), (tb * nnb + nb) * 1024))
    k('s_waitcnt lgkmcnt(0)')
    k('s_barrier')
    k('s_mul_i32 s58, s5, 5120')
    k('v_add_u32 v%d, s58, v%d' % (ta, vo16))
    red = xf[0][0]
    k('v_add_u32 v%d, 40960, v%d' % (tb_, ta))
    for w in range(4):
        for nb in range(nnb):
            dstr = accb + nb * 4 if w == 0 else red + ((w - 1) * nnb + nb) * 4
            k('ds_read_b128 %s, v%d offset:%d' % (vr(dstr, 4), ta if w < 2 else tb_, (w & 1) * 20480 + nb * 1024))
    k('s_waitcnt lgkmcnt(0)')
    for nb in range(nnb):
        for i in range(4):
            for w in range(3):
                k('v_add_f32 v%d, v%d, v%d' % (accb + nb * 4 + i, accb + nb * 4 + i, red + (w * nnb + nb) * 4 + i))
    t = accb + 24
    vs = accb + 32
    vx = accb + 36
    k('v_mov_b32 v%d, 0' % vs)
    k('v_mov_b32 v%d, 0' % (vs + 1))
    for p in range(npair):
        full = 2 * p + 1 < nnb
        res = vres + p * 4
        nbk = 2 if full else 1
        for b in range(nbk):
            a = accb + (2 * p + b) * 4
            for i in range(4):
                src = res + 2 * b + i // 2
                if i % 2 == 0:
                    k('v_lshlrev_b32 v%d, 16, v%d' % (vx, src))
                else:
                    k('v_and_b32 v%d, 0xffff0000, v%d' % (vx, src))
                k('v_add_f32 v%d, v%d, v%d' % (t + 4 * b + i, a + i, vx))
        for b in range(nbk):
            k('v_cvt_pk_bf16_f32 v%d, v%d, v%d' % (res + 2 * b, t + 4 * b, t + 4 * b + 1))
            k('v_cvt_pk_bf16_f32 v%d, v%d, v%d' % (res + 2 * b + 1, t + 4 * b + 2, t + 4 * b + 3))
        if full:
            k('buffer_store_dwordx4 %s, v%d, s[24:27], 0 offen offset:%d' % (vr(res, 4), vra, p * 64))
        else:
            k('buffer_store_dwordx2 %s, v%d, s[24:27], 0 offen offset:%d' % (vr(res, 2), vrb, p * 64))
        if want_stats:
            for i in range(2 * nbk):
                k('v_lshlrev_b32 v%d, 16, v%d' % (vx, res + i))
                k('v_and_b32 v%d, 0xffff0000, v%d' % (vx + 2, res + i))
                k('v_add_f32 v%d, v%d, v%d' % (vs, vs, vx))
                k('v_fmac_f32 v%d, v%d, v%d' % (vs + 1, vx, vx))
                k('v_add_f32 v%d, v%d, v%d' % (vs, vs, vx + 2))
                k('v_fmac_f32 v%d, v%d, v%d' % (vs + 1, vx + 2, vx + 2))
    if want_stats:
        for sh in (16, 32):
            k('v_xor_b32 v%d, %d, v%d' % (vx, sh, vl))
            k('v_lshlrev_b32 v%d, 2, v%d' % (vx, vx))
            k('ds_bpermute_b32 v%d, v%d, v%d' % (vx + 1, vx, vs))
            k('ds_bpermute_b32 v%d, v%d, v%d' % (vx + 2, vx, vs + 1))
            k('s_waitcnt lgkmcnt(0)')
            k('v_add_f32 v%d, v%d, v%d' % (vs, vs, vx + 1))
            k('v_add_f32 v%d, v%d, v%d' % (vs + 1, vs + 1, vx + 2))
        k('s_lshl_b32 s58, s5, 4')
        k('s_add_u32 s58, s58, s56')
        k('v_add_u32 v%d, s58, v%d' % (vx, vl))
        k('v_lshlrev_b32 v%d, 6, v%d' % (vx, vx))
        k('s_lshl_b32 s58, s4, 3')
        k('s_add_u32 s58, s58, 0x%x' % ST_OFF)
        k('v_add_u32 v%d, s58, v%d' % (vx, vx))
        L1 = k.newlabel('st')
        k('v_cmp_gt_u32 vcc, 16, v%d' % vl)
        k('s_and_saveexec_b64 s[60:61], vcc')
        k('s_cbranch_execz %s' % L1)
        k('buffer_store_dwordx2 %s, v%d, s[20:23], 0 offen' % (vr(vs, 2), vx))
        k.label(L1)
        k('s_mov_b64 exec, s[60:61]')
    if STAMP:
        k('s_waitcnt vmcnt(0)')
        k('s_memtime s[90:91]')
        k('s_memrealtime s[92:93]')
        k('s_waitcnt lgkmcnt(0)')
        Ls = k.newlabel('st')
        k('s_cmp_lg_u32 s2, %s' % STAMP)
        k('s_cbranch_scc1 %s' % Ls)
        k('s_cmp_lg_u32 s5, 0')
        k('s_cbranch_scc1 %s' % Ls)
        mk_srd(k, 8, PTR('dbg'), 0, 256)
        k('s_sub_u32 s92, s92, s94')
        k('s_add_u32 s92, s92, s84')
        for i in range(1, 5):
            k('s_sub_u32 s%d, s%d, s84' % (84 + 2 * i, 84 + 2 * i))
            k('v_mov_b32 v1, s%d' % (84 + 2 * i))
            k('v_mov_b32 v2, 0')
            k('buffer_store_dword v1, v2, s[8:11], 0 offen offset:%d' % (4 * i))
        k.label(Ls)
    k.label(L_end)
    k('s_endpgm')
    return k, va.n, 0, LDS, NWG
```

```python
from common import *
from gemm import PTR
import os
STAMP = os.environ.get('STAMP')

NWG_ATTN = 256
CH = 8
NCH = 64 // CH
CHB = CH * 4096
NBUF = 3
THR = '0x41000000'


def attn_kernel():
    k = Kern('attn_kernel')
    L_end = k.newlabel('end')
    k('s_cmp_ge_u32 s2, %d' % NWG_ATTN)
    k('s_cbranch_scc1 %s' % L_end)
    if STAMP:
        k('s_memtime s[84:85]')
        k('s_memrealtime s[94:95]')
    k('s_load_dwordx4 s[80:83], s[0:1], 64')
    k('s_and_b32 s3, s2, 31')
    k('s_lshr_b32 s4, s2, 5')
    va = VAlloc(1)
    vl = va.get()
    k('v_and_b32 v%d, 63, v0' % vl)
    k('v_lshrrev_b32 v2, 6, v0')
    va.get()
    k('s_nop 0')
    k('v_readfirstlane_b32 s5, v2')
    k('s_waitcnt lgkmcnt(0)')
    mk_srd(k, 8, PTR('ws'), QF_OFF, 12 << 20)
    mk_srd(k, 12, PTR('ws'), O_OFF, S_TOK * D * 2)
    vo16 = va.get()
    k('v_lshlrev_b32 v%d, 4, v%d' % (vo16, vl))
    k('s_lshl_b32 s20, s3, 17')
    q = va.get(8, 4)
    k('s_lshl_b32 s21, s4, 3')
    k('s_add_u32 s21, s21, s5')
    k('s_lshl_b32 s22, s21, 11')
    k('s_add_u32 s22, s22, s20')
    k('buffer_load_dwordx4 %s, v%d, s[8:11], s22 offen' % (vr(q, 4), vo16))
    k('buffer_load_dwordx4 %s, v%d, s[8:11], s22 offen offset:1024' % (vr(q + 4, 4), vo16))
    k('s_lshl_b32 s23, s5, 11')
    k('s_add_u32 s24, s20, s23')
    k('s_add_u32 s25, s24, 0x800000')
    k('s_add_u32 s24, s24, 0x400000')
    k('s_mov_b32 s26, 0')

    def dma():
        k('s_add_u32 m0, s26, s23')
        k('s_nop 0')
        k('buffer_load_dwordx4 v%d, s[8:11], s24 offen lds' % vo16)
        k('buffer_load_dwordx4 v%d, s[8:11], s24 offen offset:1024 lds' % vo16)
        k('s_add_u32 m0, m0, %d' % (CH * 2048))
        k('s_nop 0')
        k('buffer_load_dwordx4 v%d, s[8:11], s25 offen lds' % vo16)
        k('buffer_load_dwordx4 v%d, s[8:11], s25 offen offset:1024 lds' % vo16)
        k('s_add_u32 s24, s24, %d' % (CH * 2048))
        k('s_add_u32 s25, s25, %d' % (CH * 2048))
        k('s_add_u32 s26, s26, %d' % CHB)
        k('s_cmp_eq_u32 s26, %d' % (NBUF * CHB))
        k('s_cselect_b32 s26, 0, s26')

    mk_srd(k, 16, PTR('ws'), KM_OFF, 320 * 4)
    km = va.get(6)
    k('v_lshlrev_b32 v%d, 2, v%d' % (km + 5, vl))
    for i in range(5):
        k('buffer_load_dword v%d, v%d, s[16:19], 0 offen offset:%d' % (km + i, km + 5, 256 * i))
    dma()
    dma()
    kfs = [va.get(8, 4), va.get(8, 4)]
    vfs = [va.get(8, 4), va.get(8, 4)]
    s_ = [va.get(16, 4), va.get(16, 4)]
    p_ = va.get(8, 4)
    o_ = va.get(16, 4)
    nm = va.get(16, 4)
    tm = va.get(6)
    vcur = va.get()
    vnxt = va.get()
    c100 = va.get()
    k('v_mov_b32 v%d, 0x42c80000' % c100)
    for i in range(16):
        k('v_mov_b32 v%d, 0' % (o_ + i))
    k('s_mov_b32 s40, -1')
    k('s_mov_b32 s41, 0')
    k('s_mov_b32 s42, 0xfffff')
    k('s_mov_b32 s43, 0xfffff')
    k('v_and_b32 v%d, 31, v%d' % (tm, vl))
    k('v_mov_b32 v%d, 0x3f803f80' % (tm + 1))
    k('v_cmp_eq_u32 vcc, 20, v%d' % tm)
    k('s_nop 1')
    k('v_cndmask_b32 v%d, v%d, v%d, vcc' % (tm, o_, tm + 1))
    for par in range(2):
        for i in range(4):
            k('v_mov_b32 v%d, 0' % (kfs[par] + 4 + i))
        for i in range(8):
            k('v_mov_b32 v%d, v%d' % (vfs[par] + i, tm))
    k('s_mov_b32 s27, 0')
    k('s_mov_b32 s28, %d' % CHB)
    k('v_mov_b32 v%d, v%d' % (vcur, vo16))
    k('v_add_u32 v%d, s28, v%d' % (vnxt, vo16))

    def rd_k(tile_in_chunk):
        kf = kfs[tile_in_chunk & 1]
        if tile_in_chunk < CH:
            a, off = vcur, tile_in_chunk * 2048
        else:
            a, off = vnxt, (tile_in_chunk - CH) * 2048
        return ['ds_read_b128 %s, v%d offset:%d' % (vr(kf, 4), a, off),
                's_mov_b64 exec, s[40:41]',
                'ds_read_b64 %s, v%d offset:%d' % (vr(kf + 4, 2), a, off + 1024),
                's_mov_b64 exec, -1']

    def rd_v(tile_in_chunk):
        off = CH * 2048 + tile_in_chunk * 2048
        vf = vfs[tile_in_chunk & 1]
        return ['s_mov_b64 exec, s[42:43]',
                'ds_read_b128 %s, v%d offset:%d' % (vr(vf, 4), vcur, off),
                'ds_read_b128 %s, v%d offset:%d' % (vr(vf + 4, 4), vcur, off + 1024),
                's_mov_b64 exec, -1']

    def mf_s(dst, cinit, par):
        kf = kfs[par]
        return ['v_mfma_f32_32x32x16_bf16 %s, %s, %s, %s' % (vr(dst, 16), vr(kf, 4), vr(q, 4), cinit),
                'v_mfma_f32_32x32x16_bf16 %s, %s, %s, %s' % (vr(dst, 16), vr(kf + 4, 4), vr(q + 4, 4), vr(dst, 16))]

    def mf_pv(par):
        vf = vfs[par]
        return ['v_mfma_f32_32x32x16_bf16 %s, %s, %s, %s' % (vr(o_, 16), vr(vf, 4), vr(p_, 4), vr(o_, 16)),
                'v_mfma_f32_32x32x16_bf16 %s, %s, %s, %s' % (vr(o_, 16), vr(vf + 4, 4), vr(p_ + 4, 4), vr(o_, 16))]

    def max_ops(s):
        ops = []
        for i in range(5):
            ops.append('v_max3_f32 v%d, v%d, v%d, v%d' % (tm + i, s + 3 * i, s + 3 * i + 1, s + 3 * i + 2))
        ops.append('v_max3_f32 v%d, v%d, v%d, v%d' % (tm, tm, tm + 1, tm + 2))
        ops.append('v_max3_f32 v%d, v%d, v%d, v%d' % (tm + 3, tm + 3, tm + 4, s + 15))
        ops.append('v_max_f32 v%d, v%d, v%d' % (tm, tm, tm + 3))
        return ops

    def rowmax():
        k('v_mov_b32 v%d, v%d' % (tm + 1, tm))
        k('s_nop 1')
        k('v_permlane32_swap_b32 v%d, v%d' % (tm, tm + 1))
        k('v_max_f32 v%d, v%d, v%d' % (tm, tm, tm + 1))

    def exp_ops(s):
        ops = ['v_exp_f32 v%d, v%d' % (s + i, s + i) for i in range(16)]
        return ops

    def cvt_ops(s):
        return ['v_cvt_pk_bf16_f32 v%d, v%d, v%d' % (p_ + i, s + 2 * i, s + 2 * i + 1) for i in range(8)]

    k('s_waitcnt vmcnt(8)')
    k('v_mov_b32 v%d, 0' % (q + 6))
    k('v_mov_b32 v%d, 0' % (q + 7))
    k('v_cmp_gt_u32 vcc, 32, v%d' % vl)
    k('s_nop 1')
    k('v_cndmask_b32 v%d, v%d, v%d, vcc' % (q + 4, q + 6, q + 4))
    k('v_cndmask_b32 v%d, v%d, v%d, vcc' % (q + 5, q + 6, q + 5))
    k('v_max3_f32 v%d, v%d, v%d, v%d' % (km, km, km + 1, km + 2))
    k('v_max3_f32 v%d, v%d, v%d, v%d' % (km, km, km + 3, km + 4))
    for sh in (1, 2, 4, 8, 16, 32):
        k('v_xor_b32 v%d, %d, v%d' % (km + 1, sh, vl))
        k('v_lshlrev_b32 v%d, 2, v%d' % (km + 1, km + 1))
        k('ds_bpermute_b32 v%d, v%d, v%d' % (km + 2, km + 1, km))
        k('s_waitcnt lgkmcnt(0)')
        k('v_max_f32 v%d, v%d, v%d' % (km, km, km + 2))
    k('v_mov_b32 v%d, 0' % (km + 1))
    for i in range(8):
        k('v_lshlrev_b32 v%d, 16, v%d' % (km + 2, q + i))
        k('v_and_b32 v%d, 0xffff0000, v%d' % (km + 3, q + i))
        k('v_add_f32 v%d, v%d, abs(v%d)' % (km + 1, km + 1, km + 2))
        k('v_add_f32 v%d, v%d, abs(v%d)' % (km + 1, km + 1, km + 3))
    k('v_mov_b32 v%d, v%d' % (km + 2, km + 1))
    k('s_nop 1')
    k('v_permlane32_swap_b32 v%d, v%d' % (km + 1, km + 2))
    k('v_add_f32 v%d, v%d, v%d' % (km + 1, km + 1, km + 2))
    k('v_mul_f32 v%d, v%d, v%d' % (km, km, km + 1))
    k('v_mul_f32 v%d, 0x3f828f5c, v%d' % (km, km))
    k('s_waitcnt vmcnt(4)')
    k('s_barrier')
    emit_list(k, rd_k(0))
    k('s_waitcnt lgkmcnt(0)')
    emit_list(k, mf_s(s_[0], '0', 0))
    emit_list(k, rd_k(1))
    k('s_nop 7')
    k('s_nop 7')
    emit_list(k, max_ops(s_[0]))
    rowmax()
    for i in range(16):
        k('v_sub_f32 v%d, 0, v%d' % (nm + i, tm))
    for i in range(16):
        k('v_sub_f32 v%d, v%d, v%d' % (s_[0] + i, s_[0] + i, tm))
    k('v_sub_f32 v%d, v%d, v%d' % (km, km, tm))
    k('v_cmp_nle_f32 vcc, v%d, v%d' % (km, c100))
    k('s_waitcnt lgkmcnt(0)')
    k('s_mov_b32 s29, %d' % NCH)
    slow = []
    L_generic = k.newlabel('generic')
    L_fin = k.newlabel('fin')
    INIT = k.newlabel('INIT')
    k.label(INIT)
    if STAMP:
        k('s_memtime s[86:87]')
    k('s_cbranch_vccnz %s' % L_generic)

    def chunk_loop(fast):
        L_loop = k.newlabel('chunk')
        k.label(L_loop)
        k('s_waitcnt vmcnt(0)')
        k('s_barrier')
        L_nodma = k.newlabel('nodma')
        k('s_cmp_le_u32 s29, 2')
        k('s_cbranch_scc1 %s' % L_nodma)
        dma()
        k.label(L_nodma)
        for i in range(CH):
            cur, nxt = s_[i & 1], s_[1 - (i & 1)]
            pv = mf_pv((i + 1) & 1)
            sm = mf_s(nxt, vr(nm, 16), (i + 1) & 1)
            emit_list(k, rd_k(i + 2))
            emit_list(k, rd_v(i))
            if fast:
                ex = exp_ops(cur)
                k(pv[0])
                emit_list(k, ex[0:4])
                k(pv[1])
                emit_list(k, ex[4:8])
                k(sm[0])
                emit_list(k, ex[8:12])
                k(sm[1])
                emit_list(k, ex[12:16])
                k('s_nop 0')
                emit_list(k, cvt_ops(cur))
                k('s_waitcnt lgkmcnt(0)')
                k('s_nop 0')
                continue
            L_slow = k.newlabel('slow')
            L_back = k.newlabel('back')
            mx = max_ops(cur)
            k(pv[0])
            emit_list(k, mx[:4])
            k(pv[1])
            emit_list(k, mx[4:])
            k(sm[0])
            k('v_cmp_lt_f32 vcc, %s, v%d' % (THR, tm))
            k(sm[1])
            k('s_nop 4')
            k('s_cbranch_vccnz %s' % L_slow)
            k.label(L_back)
            emit_list(k, exp_ops(cur))
            k('s_nop 0')
            emit_list(k, cvt_ops(cur))
            k('s_waitcnt lgkmcnt(0)')
            k('s_nop 0')
            slow.append((L_slow, L_back, cur, nxt))
        k('s_mov_b32 s27, s28')
        k('s_add_u32 s28, s28, %d' % CHB)
        k('s_cmp_eq_u32 s28, %d' % (NBUF * CHB))
        k('s_cselect_b32 s28, 0, s28')
        k('v_add_u32 v%d, s27, v%d' % (vcur, vo16))
        k('v_add_u32 v%d, s28, v%d' % (vnxt, vo16))
        k('s_sub_u32 s29, s29, 1')
        k('s_cmp_lg_u32 s29, 0')
        k('s_cbranch_scc1 %s' % L_loop)

    chunk_loop(True)
    k('s_branch %s' % L_fin)
    k.label(L_generic)
    chunk_loop(False)
    k.label(L_fin)
    if STAMP:
        k('s_memtime s[88:89]')
    emit_list(k, mf_pv(1))
    k('s_nop 7')
    k('s_nop 7')
    k('v_mov_b32 v%d, v%d' % (tm, o_ + 8))
    k('v_mov_b32 v%d, v%d' % (tm + 1, o_ + 8))
    k('s_nop 1')
    k('v_permlane32_swap_b32 v%d, v%d' % (tm, tm + 1))
    k('v_rcp_f32 v%d, v%d' % (tm + 1, tm + 1))
    k('s_nop 0')
    for i in range(12):
        k('v_mul_f32 v%d, v%d, v%d' % (o_ + i, o_ + i, tm + 1))
    for g in range(3):
        k('v_cvt_pk_bf16_f32 v%d, v%d, v%d' % (p_ + 2 * g, o_ + 4 * g, o_ + 4 * g + 1))
        k('v_cvt_pk_bf16_f32 v%d, v%d, v%d' % (p_ + 2 * g + 1, o_ + 4 * g + 2, o_ + 4 * g + 3))
    k('s_lshr_b32 s22, s21, 1')
    k('s_mul_i32 s22, s22, 20')
    k('s_lshl_b32 s22, s22, 12')
    k('s_and_b32 s30, s21, 1')
    k('s_lshl_b32 s30, s30, 11')
    k('s_add_u32 s22, s22, s30')
    k('v_and_b32 v%d, 31, v%d' % (tm, vl))
    k('v_bfe_u32 v%d, v%d, 2, 2' % (tm + 2, tm))
    k('v_sub_u32 v%d, 0, v%d' % (tm + 2, tm + 2))
    k('v_lshlrev_b32 v%d, 6, v%d' % (tm, tm))
    k('v_add_u32 v%d, s22, v%d' % (tm, tm))
    k('v_lshrrev_b32 v%d, 5, v%d' % (tm + 1, vl))
    k('s_mul_i32 s22, s3, 20')
    for g in range(3):
        k('v_lshl_add_u32 v%d, v%d, 2, s22' % (tm + 3, tm + 1))
        if g:
            k('v_add_u32 v%d, %d, v%d' % (tm + 3, 8 * g, tm + 3))
        k('v_lshrrev_b32 v%d, 5, v%d' % (tm + 4, tm + 3))
        k('v_lshl_add_u32 v%d, v%d, 12, v%d' % (tm + 4, tm + 4, tm))
        k('v_lshrrev_b32 v%d, 3, v%d' % (tm + 5, tm + 3))
        k('v_xor_b32 v%d, v%d, v%d' % (tm + 5, tm + 5, tm + 2))
        k('v_and_b32 v%d, 3, v%d' % (tm + 5, tm + 5))
        k('v_lshl_add_u32 v%d, v%d, 4, v%d' % (tm + 4, tm + 5, tm + 4))
        k('v_bfe_u32 v%d, v%d, 2, 1' % (tm + 5, tm + 3))
        k('v_lshl_add_u32 v%d, v%d, 3, v%d' % (tm + 4, tm + 5, tm + 4))
        if g == 2:
            k('v_mov_b32 v%d, 0x7ffffff0' % (tm + 5))
            k('v_cmp_gt_u32 vcc, 32, v%d' % vl)
            k('s_nop 1')
            k('v_cndmask_b32 v%d, v%d, v%d, vcc' % (tm + 4, tm + 5, tm + 4))
        k('buffer_store_dwordx2 %s, v%d, s[12:15], 0 offen' % (vr(p_ + 2 * g, 2), tm + 4))
    if STAMP:
        k('s_waitcnt vmcnt(0)')
        k('s_memtime s[90:91]')
        k('s_memrealtime s[92:93]')
        k('s_waitcnt lgkmcnt(0)')
        Ls = k.newlabel('st')
        k('s_cmp_lg_u32 s2, %s' % STAMP)
        k('s_cbranch_scc1 %s' % Ls)
        k('s_cmp_lg_u32 s5, 0')
        k('s_cbranch_scc1 %s' % Ls)
        mk_srd(k, 8, PTR('dbg'), 0, 256)
        k('s_sub_u32 s92, s92, s94')
        k('s_add_u32 s92, s92, s84')
        for i in range(1, 5):
            k('s_sub_u32 s%d, s%d, s84' % (84 + 2 * i, 84 + 2 * i))
            k('v_mov_b32 v1, s%d' % (84 + 2 * i))
            k('v_mov_b32 v2, 0')
            k('buffer_store_dword v1, v2, s[8:11], 0 offen offset:%d' % (4 * i))
        k.label(Ls)
    k('s_branch %s' % L_end)
    for (L_slow, L_back, cur, nxt) in slow:
        k.label(L_slow)
        k('s_nop 7')
        k('s_nop 7')
        rowmax()
        k('v_max_f32 v%d, 0, v%d' % (tm, tm))
        k('v_sub_f32 v%d, 0, v%d' % (tm + 1, tm))
        k('v_exp_f32 v%d, v%d' % (tm + 1, tm + 1))
        for i in range(16):
            k('v_sub_f32 v%d, v%d, v%d' % (nm + i, nm + i, tm))
        for i in range(16):
            k('v_sub_f32 v%d, v%d, v%d' % (cur + i, cur + i, tm))
        for i in range(16):
            k('v_sub_f32 v%d, v%d, v%d' % (nxt + i, nxt + i, tm))
        for i in range(16):
            k('v_mul_f32 v%d, v%d, v%d' % (o_ + i, o_ + i, tm + 1))
        k('s_branch %s' % L_back)
    k.label(L_end)
    k('s_endpgm')
    idx = k.lines.index(INIT + ':')
    init = ['    v_mov_b32 v%d, 0' % (p_ + i) for i in range(8)]
    k.lines[idx:idx] = init
    return k, va.n, 0, NBUF * CHB, NWG_ATTN
```

```python
from common import *
from gemm import fbits, PTR, QSCALE, Ctx


import os
STAMP = os.environ.get('STAMP')


def gemm32_kernel(name, *, K, NB, mtiles, ntiles, xsrc, XS, wsrcs, WS, N, epi, cs_base, dst=None, proto=1,
                  xcdmap=False, extra=None):
    k = Kern(name)
    nst = [0]

    def stamp():
        if STAMP:
            k('s_memtime s[%d:%d]' % (84 + 2 * nst[0], 85 + 2 * nst[0]))
            nst[0] += 1
    c = Ctx()
    TM = TN = 128
    nmat = len(wsrcs)
    S = K // 64
    XB = TM * 128
    WB = 64 * 256
    STAGE = XB + nmat * WB
    SB = 2048
    AUX = 0
    LDS = SB + NB * STAGE
    NWG = mtiles * ntiles
    DPW = 4 + 4 * nmat
    c.__dict__.update(locals())

    if xcdmap:
        NWG = 256
    L_end = k.newlabel('end')
    k('s_cmp_ge_u32 s2, %d' % NWG)
    k('s_cbranch_scc1 %s' % L_end)
    stamp()
    k('s_load_dwordx16 s[64:79], s[0:1], 0')
    k('s_load_dwordx4 s[80:83], s[0:1], 64')
    if xcdmap:
        NWG = 256
        k('s_and_b32 s3, s2, 1')
        k('s_lshl_b32 s3, s3, 3')
        k('s_bfe_u32 s4, s2, 0x30003')
        k('s_add_u32 s3, s3, s4')
        k('s_lshr_b32 s5, s2, 6')
        k('s_bfe_u32 s6, s2, 0x20001')
        k('s_lshl_b32 s4, s6, 2')
        k('s_cmp_eq_u32 s6, 3')
        k('s_cselect_b32 s7, 1, 0')
        k('s_sub_u32 s4, s4, s7')
        k('s_add_u32 s4, s4, s5')
        k('s_cmp_ge_u32 s6, 2')
        k('s_cselect_b32 s7, 3, 4')
        k('s_cmp_ge_u32 s5, s7')
        k('s_cbranch_scc1 %s' % L_end)
    else:
        k('s_and_b32 s3, s2, %d' % (mtiles - 1))
        k('s_lshr_b32 s4, s2, %d' % (mtiles.bit_length() - 1))
    if os.environ.get('FORCE0'):
        k('s_mov_b32 s3, 0')
        k('s_mov_b32 s4, 0')
    va = VAlloc(1)
    vl = va.get()
    k('v_and_b32 v%d, 63, v0' % vl)
    k('v_lshrrev_b32 v2, 6, v0')
    va.get()
    k('s_nop 0')
    k('v_readfirstlane_b32 s5, v2')
    k('s_lshr_b32 s62, s5, 2')
    k('s_and_b32 s5, s5, 3')
    k('s_mul_i32 s56, s3, %d' % TM)
    k('s_mul_i32 s57, s4, %d' % TN)
    k('s_lshr_b32 s6, s5, 1')
    k('s_and_b32 s7, s5, 1')
    ta = va.get()
    tb_ = va.get()
    vxd = [va.get(), va.get()]
    vwd = va.get()
    k('s_mov_b32 s58, %d' % XS)
    for par in range(2):
        k('v_lshrrev_b32 v%d, 4, v%d' % (ta, vl))
        if par:
            k('v_add_u32 v%d, 4, v%d' % (ta, ta))
        k('v_xor_b32 v%d, v%d, v%d' % (ta, ta, vl))
        k('v_and_b32 v%d, 7, v%d' % (ta, ta))
        k('v_lshrrev_b32 v%d, 3, v%d' % (tb_, vl))
        k('v_add_u32 v%d, s56, v%d' % (tb_, tb_))
        k('v_mul_lo_u32 v%d, v%d, s58' % (vxd[par], tb_))
        k('v_lshl_add_u32 v%d, v%d, 4, v%d' % (vxd[par], ta, vxd[par]))
    k('v_lshrrev_b32 v%d, 4, v%d' % (ta, vl))
    k('v_lshlrev_b32 v%d, 2, v%d' % (tb_, ta))
    k('v_xor_b32 v%d, v%d, v%d' % (tb_, tb_, vl))
    k('v_and_b32 v%d, 15, v%d' % (tb_, tb_))
    k('v_mul_u32_u24 v%d, %d, v%d' % (vwd, WS, ta))
    k('v_lshl_add_u32 v%d, v%d, 4, v%d' % (vwd, tb_, vwd))
    k('s_lshl_b32 s58, s57, 1')
    k('v_add_u32 v%d, s58, v%d' % (vwd, vwd))
    k('s_lshl_b32 s52, s5, 12')
    k('s_mul_i32 s48, s5, %d' % (32 * XS))
    k('s_mul_i32 s49, s5, %d' % (16 * WS))
    k('s_mov_b32 s50, %d' % SB)
    k('s_mov_b32 s51, %d' % SB)
    k('s_waitcnt lgkmcnt(0)')
    if os.environ.get('FINE'):
        k('s_memtime s[86:87]')

    def srd_of(sd, src):
        if src[0] == 'ptr':
            mk_srd(k, sd, PTR(src[1]), 0, KSIZE[src[1]])
        else:
            mk_srd(k, sd, PTR('ws'), src[1], src[2])
    srd_of(8, xsrc)
    for m, w in enumerate(wsrcs):
        mk_srd(k, 12 + 4 * m, PTR(w), 0, KSIZE[w])

    def dma_q(qi):
        ops = []
        g = ['s_add_u32 s53, s50, s52',
             's_add_u32 m0, s53, %d' % (qi * 1024),
             's_add_u32 s54, s48, %d' % (qi * 8 * XS),
             'buffer_load_dwordx4 v%d, s[8:11], s54 offen lds' % vxd[qi & 1]]
        ops.append(g)
        for m in range(nmat):
            g = ['s_add_u32 m0, s53, %d' % (XB + m * WB + qi * 1024),
                 's_add_u32 s54, s49, %d' % (qi * 4 * WS),
                 'buffer_load_dwordx4 v%d, s[%d:%d], s54 offen lds' % (vwd, 12 + 4 * m, 15 + 4 * m)]
            ops.append(g)
        if qi == 3:
            ops.append(['s_add_u32 s48, s48, 128', 's_add_u32 s49, s49, %d' % (64 * WS),
                        's_add_u32 s50, s50, %d' % STAGE, 's_cmp_eq_u32 s50, %d' % (SB + NB * STAGE),
                        's_cselect_b32 s50, %d, s50' % SB])
        return ops

    L_comp = k.newlabel('comp')
    k('s_cmp_eq_u32 s62, 0')
    k('s_cbranch_scc1 %s' % L_comp)
    for s in range(NB - 1):
        for qi in range(4):
            emit_list(k, dma_q(qi))
    lv = VAlloc(16)
    lxs, lws, lxa, lwa = lv.get(), lv.get(), lv.get(), lv.get()
    lone, llo, lhi = lv.get(), lv.get(), lv.get()
    lsx = lv.get(4, 2)
    lu = lv.get(8, 2)
    lcs = lv.get(8 * nmat, 4)
    lxr = lv.get(16, 4)
    lwr = lv.get(16 * nmat, 4)
    lt = lv.get(4)

    def process():
        pass

    if proto == 2:
        for qi in range(4):
            emit_list(k, dma_q(qi))
        k('s_waitcnt vmcnt(%d)' % ((NB - 1) * DPW))
        k('s_barrier')
        process()
        k('s_waitcnt vmcnt(%d)' % ((NB - 2) * DPW))
        k('s_barrier')
        process()
        nl = S - NB
        if nl:
            k('s_mov_b32 s55, %d' % nl)
            Lld = k.newlabel('ld')
            k.label(Lld)
            k('s_barrier')
            for qi in range(4):
                emit_list(k, dma_q(qi))
            k('s_waitcnt vmcnt(%d)' % ((NB - 2) * DPW))
            k('s_barrier')
            process()
            k('s_sub_u32 s55, s55, 1')
            k('s_cmp_lg_u32 s55, 0')
            k('s_cbranch_scc1 %s' % Lld)
        for st in range(nl + 1, S - 1):
            k('s_barrier')
            k('s_waitcnt vmcnt(%d)' % (max(0, S - 1 - (st + 1)) * DPW))
            k('s_barrier')
            process()
    else:
        k('s_waitcnt vmcnt(%d)' % ((NB - 2) * DPW))
        k('s_barrier')
        process()
        nl = S - NB + 1
        k('s_mov_b32 s55, %d' % nl)
        Lld = k.newlabel('ld')
        k.label(Lld)
        k('s_waitcnt vmcnt(%d)' % ((NB - 3) * DPW))
        k('s_barrier')
        for qi in range(4):
            emit_list(k, dma_q(qi))
        process()
        k('s_sub_u32 s55, s55, 1')
        k('s_cmp_lg_u32 s55, 0')
        k('s_cbranch_scc1 %s' % Lld)
        for j in range(nl + 1, S):
            k('s_waitcnt vmcnt(%d)' % (max(0, S - 1 - j) * DPW))
            k('s_barrier')
            process()
    if extra is not None:
        extra(k, lv, vl)
    k('s_endpgm')
    k.label(L_comp)

    mk_srd(k, 20, PTR('ws'), 0, 0x100000)
    if dst is not None:
        srd_of(24, dst)
    vt = va.get(16, 4)
    vcs = va.get()
    vta = va.get()
    k('v_add_u32 v%d, s56, v0' % vta)
    k('v_lshlrev_b32 v%d, 6, v%d' % (vta, vta))
    k('v_add_u32 v%d, 0x%x, v%d' % (vta, ST_OFF, vta))
    for i in range(4):
        k('buffer_load_dwordx4 %s, v%d, s[20:23], 0 offen offset:%d' % (vr(vt + 4 * i, 4), vta, 16 * i))
    vci = va.get()
    k('v_add_u32 v%d, s57, v0' % vci)
    if nmat == 2:
        k('v_mov_b32 v%d, %d' % (vcs, cs_base[0]))
        k('v_mov_b32 v%d, %d' % (vta, cs_base[1] - TN))
        k('v_cmp_gt_u32 vcc, %d, v0' % TN)
        k('s_nop 1')
        k('v_cndmask_b32 v%d, v%d, v%d, vcc' % (vcs, vta, vcs))
        k('v_add_u32 v%d, v%d, v%d' % (vci, vci, vcs))
    elif cs_base[0]:
        k('v_add_u32 v%d, %d, v%d' % (vci, cs_base[0], vci))
    k('v_lshlrev_b32 v%d, 2, v%d' % (vci, vci))
    k('v_add_u32 v%d, 0x%x, v%d' % (vci, CS_OFF, vci))
    vcq = va.get(3)
    k('buffer_load_dword v%d, v%d, s[20:23], 0 offen' % (vcs, vci))
    for q in range(3):
        k('s_mov_b32 s58, %d' % ((q + 1) * 5376 * 4))
        k('buffer_load_dword v%d, v%d, s[20:23], s58 offen' % (vcq + q, vci))

    vxr = [va.get() for _ in range(4)]
    vwr = [va.get() for _ in range(2)]
    vxa = [va.get() for _ in range(4)]
    vwa = [va.get() for _ in range(2)]
    vh = va.get()
    vt31 = va.get()
    k('v_lshrrev_b32 v%d, 5, v%d' % (vh, vl))
    k('v_and_b32 v%d, 31, v%d' % (vt31, vl))
    k('s_lshl_b32 s58, s6, 13')
    for s in range(4):
        k('v_bfe_u32 v%d, v%d, 1, 3' % (ta, vt31))
        k('v_add_u32 v%d, %d, v%d' % (tb_, 2 * s, vh))
        k('v_xor_b32 v%d, v%d, v%d' % (ta, ta, tb_))
        k('v_lshlrev_b32 v%d, 7, v%d' % (tb_, vt31))
        k('v_lshl_add_u32 v%d, v%d, 4, v%d' % (vxr[s], ta, tb_))
        k('v_add_u32 v%d, s58, v%d' % (vxr[s], vxr[s]))
    vrr = va.get()
    k('v_bfe_u32 v%d, v%d, 2, 2' % (vrr, vl))
    for nb in range(2):
        k('s_lshl_b32 s58, s7, 1')
        k('s_add_u32 s58, s58, %d' % nb)
        k('v_xor_b32 v%d, s58, v%d' % (ta, vrr))
        k('v_lshlrev_b32 v%d, 6, v%d' % (ta, ta))
        k('v_lshl_add_u32 v%d, v%d, 8, v%d' % (ta, vrr, ta))
        k('v_lshl_add_u32 v%d, v%d, 11, v%d' % (ta, vh, ta))
        k('v_and_b32 v%d, 1, v%d' % (tb_, vl))
        k('v_lshl_add_u32 v%d, v%d, 5, v%d' % (ta, tb_, ta))
        k('v_bfe_u32 v%d, v%d, 4, 1' % (tb_, vl))
        k('v_lshl_add_u32 v%d, v%d, 4, v%d' % (ta, tb_, ta))
        k('v_bfe_u32 v%d, v%d, 1, 1' % (tb_, vl))
        k('v_lshl_add_u32 v%d, v%d, 3, v%d' % (ta, tb_, ta))
        k('v_add_u32 v%d, %d, v%d' % (vwr[nb], XB, ta))

    xf = [[va.get(4, 4) for _ in range(2)] for _ in range(3)]
    wf = [[[va.get(4, 4) for _ in range(2)] for _ in range(nmat)] for _ in range(3)]
    nacc = nmat * 4 * 16
    accb = va.get(nacc, 4)
    acc = lambda m, nb, tb: accb + ((m * 2 + nb) * 2 + tb) * 16

    def aux_hook():
        k('s_waitcnt vmcnt(0)')
        for q in range(3):
            k('v_add_f32 v%d, v%d, v%d' % (vcs, vcs, vcq + q))
        for i in range(1, 8):
            k('v_add_f32 v%d, v%d, v%d' % (vt, vt, vt + 2 * i))
            k('v_add_f32 v%d, v%d, v%d' % (vt + 1, vt + 1, vt + 2 * i + 1))
        k('v_mul_f32 v%d, %s, v%d' % (vt, fbits(1.0 / D), vt))
        k('v_mul_f32 v%d, %s, v%d' % (vt + 1, fbits(1.0 / D), vt + 1))
        k('v_fma_f32 v%d, -v%d, v%d, v%d' % (vt + 1, vt, vt, vt + 1))
        k('v_max_f32 v%d, 0, v%d' % (vt + 1, vt + 1))
        k('v_add_f32 v%d, %s, v%d' % (vt + 1, fbits(1e-5), vt + 1))
        k('v_rsq_f32 v%d, v%d' % (vt + 1, vt + 1))
        k('s_nop 0')
        k('v_mul_f32 v%d, v%d, v%d' % (vt, vt, vt + 1))
        k('v_sub_f32 v%d, 0, v%d' % (vt, vt))
        k('v_lshlrev_b32 v%d, 3, v0' % ta)
        L1 = k.newlabel('aux')
        k('v_cmp_gt_u32 vcc, %d, v0' % TM)
        k('s_and_saveexec_b64 s[60:61], vcc')
        k('s_cbranch_execz %s' % L1)
        k('ds_write_b64 v%d, %s offset:%d' % (ta, vr(vt, 2), AUX))
        k.label(L1)
        k('s_mov_b64 exec, s[60:61]')
        L2 = k.newlabel('aux')
        k('v_lshlrev_b32 v%d, 2, v0' % ta)
        k('v_cmp_gt_u32 vcc, %d, v0' % (nmat * TN))
        k('s_and_saveexec_b64 s[60:61], vcc')
        k('s_cbranch_execz %s' % L2)
        k('ds_write_b32 v%d, v%d offset:%d' % (ta, vcs, AUX + TM * 8))
        k.label(L2)
        k('s_mov_b64 exec, s[60:61]')

    c.__dict__.update(locals())

    def read_ops(st, s):
        ops = []
        for tb in range(2):
            ops.append('ds_read_b128 %s, v%d offset:%d' % (vr(xf[st][tb], 4), vxa[s], tb * 4096))
        for m in range(nmat):
            for nb in range(2):
                for i in range(2):
                    ops.append('ds_read_b64_tr_b16 %s, v%d offset:%d' % (
                        vr(wf[st][m][nb] + 2 * i, 2), vwa[nb], m * WB + (16 * s + 4 * i) * 256))
        return ops

    def addr_ops():
        ops = ['v_add_u32 v%d, s51, v%d' % (vxa[s], vxr[s]) for s in range(4)]
        ops += ['v_add_u32 v%d, s51, v%d' % (vwa[nb], vwr[nb]) for nb in range(2)]
        ops += ['s_add_u32 s51, s51, %d' % STAGE, 's_cmp_eq_u32 s51, %d' % (SB + NB * STAGE),
                's_cselect_b32 s51, %d, s51' % SB]
        return ops

    def mfma_ops(st, swap, zero=False):
        ops = []
        for m in range(nmat):
            for nb in range(2):
                for tb in range(2):
                    a, b = vr(wf[st][m][nb], 4), vr(xf[st][tb], 4)
                    if swap:
                        a, b = b, a
                    d = vr(acc(m, nb, tb), 16)
                    ops.append('v_mfma_f32_32x32x16_bf16 %s, %s, %s, %s' % (d, a, b, '0' if zero else d))
        return ops

    def iteration_old(swap, first, do_dma, vm):
        for s in range(4):
            if s == 0:
                k('s_waitcnt lgkmcnt(0)')
                k('s_barrier')
                emit_list(k, addr_ops())
            mem = read_ops(s & 1, s)
            if os.environ.get('NOREAD'):
                mem = mem[:int(os.environ['NOREAD'])] + ['s_nop 0', 's_nop 0']
            mf = [] if (first and s == 0) else mfma_ops((s + 1) & 1, swap)
            emit_list(k, mem[:2])
            emit_list(k, interleave(mf, mem[2:]))
            k('s_waitcnt lgkmcnt(0)')

    NR = 2 + 4 * nmat

    def substep(t, swap):
        T = 4 * S
        mem = []
        if proto == 2 and t % 4 == 0 and t >= 4 and t + 4 < T:
            k('s_barrier')
        if t + 2 < T:
            if (t + 2) % 4 == 0:
                k('s_barrier')
                emit_list(k, addr_ops())
            mem = read_ops((t + 2) % 3, (t + 2) % 4)
        mf = mfma_ops(t % 3, swap, zero=(t == 0))
        emit_list(k, mem[:2])
        emit_list(k, interleave(mf, mem[2:]))
        if t + 1 < T:
            k('s_waitcnt lgkmcnt(%d)' % (NR if t + 2 < T else 0))

    def main(swap):
        nst[0] = 1
        if not os.environ.get('FINE'):
            stamp()
        k('s_waitcnt lgkmcnt(0)')
        k('s_barrier')
        if os.environ.get('FINE'):
            k('s_memtime s[88:89]')
            nst[0] = 6
        emit_list(k, addr_ops())
        emit_list(k, read_ops(0, 0))
        emit_list(k, read_ops(1, 1))
        k('s_waitcnt lgkmcnt(%d)' % NR)
        for t in range(4):
            substep(t, swap)
        stamp()
        aux_hook()
        nloop = (S - 2) // 3
        if nloop:
            k('s_mov_b32 s55, %d' % nloop)
            lab = k.newlabel('loop')
            k.label(lab)
            for t in range(4, 16):
                substep(t, swap)
            k('s_sub_u32 s55, s55, 1')
            k('s_cmp_lg_u32 s55, 0')
            k('s_cbranch_scc1 %s' % lab)
        for t in range(4 + 12 * nloop, 4 * S):
            substep(t, swap)
        k('s_nop 7')
        k('s_nop 7')
        nst[0] = 3
        stamp()

    c.main = main
    epi(k, c)
    if STAMP:
        k('s_waitcnt vmcnt(0)')
        nst[0] = 4
        stamp()
        k('s_waitcnt lgkmcnt(0)')
        Ls = k.newlabel('st')
        k('s_cmp_lg_u32 s2, %s' % STAMP)
        k('s_cbranch_scc1 %s' % Ls)
        k('s_cmp_lg_u32 s5, 0')
        k('s_cbranch_scc1 %s' % Ls)
        mk_srd(k, 8, PTR('dbg'), 0, 256)
        for i in range(1, 5):
            k('s_sub_u32 s%d, s%d, s84' % (84 + 2 * i, 84 + 2 * i))
            k('v_mov_b32 v1, s%d' % (84 + 2 * i))
            k('v_mov_b32 v2, 0')
            k('buffer_store_dword v1, v2, s[8:11], 0 offen offset:%d' % (4 * i))
        k.label(Ls)
    k.label(L_end)
    k('s_endpgm')
    return k, va.n, 0, LDS, NWG


def epi32_qkv(k, c):
    va = c.va
    vl, vh, vt31 = c.vl, c.vh, c.vt31
    L_v = k.newlabel('vpath')
    L_done = k.newlabel('qkvdone')
    mk_srd(k, 24, PTR('ws'), QF_OFF, 12 << 20)
    k('s_cmp_ge_u32 s4, 10')
    k('s_cbranch_scc1 %s' % L_v)
    big = va.get(64, 4)
    vst = big
    vto = big + 4
    vno = big + 8
    vcsr = big + 16
    vp = big + 48
    vx = big + 56
    k('s_lshl_b32 s58, s4, 5')
    k('s_lshl_b32 s60, s7, 4')
    k('s_add_u32 s58, s58, s60')
    k('s_cmp_lt_u32 s4, 5')
    k('s_cselect_b32 s61, 0, 160')
    k('s_cselect_b32 s60, 0, 0x400000')
    k('s_sub_u32 s58, s58, s61')
    k('s_mov_b32 s61, 52429')
    for nb in range(2):
        for j in range(4):
            o = vno + 4 * nb + j
            k('v_lshl_add_u32 v%d, v%d, 2, s58' % (vx + 1, vh))
            k('v_add_u32 v%d, %d, v%d' % (vx + 1, nb * 8 + j, vx + 1))
            k('v_mul_lo_u32 v%d, v%d, s61' % (vx + 2, vx + 1))
            k('v_lshrrev_b32 v%d, 18, v%d' % (vx + 2, vx + 2))
            k('v_mul_u32_u24 v%d, 5, v%d' % (vx + 3, vx + 2))
            k('v_sub_u32 v%d, v%d, v%d' % (vx + 3, vx + 1, vx + 3))
            k('v_lshlrev_b32 v%d, 17, v%d' % (o, vx + 2))
            k('v_lshrrev_b32 v%d, 2, v%d' % (vx + 1, vx + 3))
            k('v_lshl_add_u32 v%d, v%d, 10, v%d' % (o, vx + 1, o))
            k('v_bfe_u32 v%d, v%d, 1, 1' % (vx + 1, vx + 3))
            k('v_lshl_add_u32 v%d, v%d, 9, v%d' % (o, vx + 1, o))
            k('v_and_b32 v%d, 1, v%d' % (vx + 1, vx + 3))
            k('v_lshl_add_u32 v%d, v%d, 3, v%d' % (o, vx + 1, o))
            k('v_add_u32 v%d, s60, v%d' % (o, o))
    k('s_lshl_b32 s58, s3, 2')
    k('s_lshl_b32 s60, s6, 1')
    k('s_add_u32 s58, s58, s60')
    k('s_lshl_b32 s58, s58, 11')
    k('v_lshlrev_b32 v%d, 4, v%d' % (vto, vt31))
    k('v_add_u32 v%d, s58, v%d' % (vto, vto))
    for nb in range(2):
        for j in range(4):
            k('v_add_u32 v%d, v%d, v%d' % (vno + 4 * nb + j, vno + 4 * nb + j, vto))
    c.main(False)
    k('s_cmp_lt_u32 s4, 5')
    k('s_cselect_b32 s59, %s, 1.0' % fbits(QSCALE))
    k('s_lshl_b32 s58, s6, 9')
    k('v_lshlrev_b32 v%d, 3, v%d' % (vx, vt31))
    k('v_add_u32 v%d, s58, v%d' % (vx, vx))
    for tb in range(2):
        k('ds_read_b64 %s, v%d offset:%d' % (vr(vst + 2 * tb, 2), vx, c.AUX + tb * 256))
    k('s_lshl_b32 s58, s7, 8')
    k('v_lshlrev_b32 v%d, 6, v%d' % (vx + 1, vh))
    k('v_add_u32 v%d, s58, v%d' % (vx + 1, vx + 1))
    for nb in range(2):
        for j in range(4):
            k('ds_read_b128 %s, v%d offset:%d' % (vr(vcsr + 16 * nb + 4 * j, 4), vx + 1,
                                                   c.AUX + c.TM * 8 + nb * 128 + j * 16))
    k('s_waitcnt lgkmcnt(0)')
    for tb in range(2):
        k('v_mul_f32 v%d, s59, v%d' % (vst + 2 * tb, vst + 2 * tb))
        k('v_mul_f32 v%d, s59, v%d' % (vst + 2 * tb + 1, vst + 2 * tb + 1))
    vkm = vx + 3
    k('v_mov_b32 v%d, 0' % vkm)
    for tb in range(2):
        for nb in range(2):
            a = c.acc(0, nb, tb)
            for j in range(4):
                q = vp + 4 * (j & 1)
                P = lambda r: 'v[%d:%d]' % (r, r + 1)
                st_ = P(vst + 2 * tb)
                for i in range(0, 4, 2):
                    k('v_pk_mul_f32 %s, %s, %s op_sel:[0,1] op_sel_hi:[1,1]' % (P(q + i), P(a + 4 * j + i), st_))
                for i in range(0, 4, 2):
                    k('v_pk_fma_f32 %s, %s, %s, %s op_sel_hi:[1,0,1]' % (
                        P(q + i), P(vcsr + 16 * nb + 4 * j + i), st_, P(q + i)))
                k('v_max3_f32 v%d, abs(v%d), abs(v%d), v%d' % (vkm, q, q + 1, vkm))
                k('v_max3_f32 v%d, abs(v%d), abs(v%d), v%d' % (vkm, q + 2, q + 3, vkm))
                k('v_cvt_pk_bf16_f32 v%d, v%d, v%d' % (q, q, q + 1))
                k('v_cvt_pk_bf16_f32 v%d, v%d, v%d' % (q + 1, q + 2, q + 3))
                k('buffer_store_dwordx2 %s, v%d, s[24:27], 0 offen offset:%d' % (vr(q, 2), vno + 4 * nb + j, tb * 2048))
    k('s_cmp_lt_u32 s4, 5')
    k('s_cbranch_scc1 %s' % L_done)
    for sh in (1, 2, 4, 8, 16, 32):
        k('v_xor_b32 v%d, %d, v%d' % (vx, sh, vl))
        k('v_lshlrev_b32 v%d, 2, v%d' % (vx, vx))
        k('ds_bpermute_b32 v%d, v%d, v%d' % (vx + 1, vx, vkm))
        k('s_waitcnt lgkmcnt(0)')
        k('v_max_f32 v%d, v%d, v%d' % (vkm, vkm, vx + 1))
    k('s_sub_u32 s58, s2, 80')
    k('s_lshl_b32 s58, s58, 2')
    k('s_add_u32 s58, s58, s5')
    k('s_lshl_b32 s58, s58, 2')
    k('s_add_u32 s58, s58, 0x%x' % KM_OFF)
    k('v_mov_b32 v%d, s58' % vx)
    k('buffer_store_dword v%d, v%d, s[20:23], 0 offen' % (vkm, vx))
    k('s_branch %s' % L_done)

    k.label(L_v)
    vst2 = big
    vcs2 = big + 32
    vno2 = big + 34
    vy = big + 36
    vx = big + 56
    k('v_bfe_u32 v%d, v%d, 2, 1' % (vx, vl))
    k('v_lshlrev_b32 v%d, 4, v%d' % (vx, vx))
    k('v_bfe_u32 v%d, v%d, 3, 2' % (vx + 1, vl))
    k('v_lshl_add_u32 v%d, v%d, 2, v%d' % (vx, vx + 1, vx))
    k('v_and_b32 v%d, 3, v%d' % (vx + 1, vl))
    k('v_add_u32 v%d, v%d, v%d' % (vx, vx, vx + 1))
    k('s_lshl_b32 s58, s7, 6')
    k('v_add_u32 v%d, s58, v%d' % (vx, vx))
    k('s_sub_u32 s58, s57, 1280')
    k('s_movk_i32 s61, 3277')
    for nb in range(2):
        o = vno2 + nb
        k('v_add_u32 v%d, s58, v%d' % (vx + 2, vx))
        if nb:
            k('v_add_u32 v%d, 32, v%d' % (vx + 2, vx + 2))
        k('v_mul_lo_u32 v%d, v%d, s61' % (vx + 3, vx + 2))
        k('v_lshrrev_b32 v%d, 16, v%d' % (vx + 3, vx + 3))
        k('v_mul_u32_u24 v%d, 20, v%d' % (o, vx + 3))
        k('v_sub_u32 v%d, v%d, v%d' % (o, vx + 2, o))
        k('v_lshlrev_b32 v%d, 4, v%d' % (o, o))
        k('v_lshl_add_u32 v%d, v%d, 17, v%d' % (o, vx + 3, o))
        k('v_lshl_add_u32 v%d, v%d, 9, v%d' % (o, vh, o))
    k('s_lshl_b32 s58, s3, 2')
    k('s_lshl_b32 s60, s6, 1')
    k('s_add_u32 s58, s58, s60')
    k('s_lshl_b32 s58, s58, 11')
    k('s_add_u32 s58, s58, 0x%x' % (VF_OFF - QF_OFF))
    for nb in range(2):
        k('v_add_u32 v%d, s58, v%d' % (vno2 + nb, vno2 + nb))
    c.main(True)
    k('v_lshlrev_b32 v%d, 2, v%d' % (vx + 1, vx))
    for nb in range(2):
        k('ds_read_b32 v%d, v%d offset:%d' % (vcs2 + nb, vx + 1, c.AUX + c.TM * 8 + nb * 128))
    k('s_lshl_b32 s58, s6, 9')
    k('v_lshlrev_b32 v%d, 5, v%d' % (vx + 1, vh))
    k('v_add_u32 v%d, s58, v%d' % (vx + 1, vx + 1))
    for tb in range(2):
        for j in range(4):
            for hh in range(2):
                k('ds_read_b128 %s, v%d offset:%d' % (vr(vst2 + 8 * j + 4 * hh, 4), vx + 1,
                                                       c.AUX + tb * 256 + j * 64 + hh * 16))
        k('s_waitcnt lgkmcnt(0)')
        for nb in range(2):
            a = c.acc(0, nb, tb)
            for t in range(2):
                for r in range(8):
                    rr = 8 * t + r
                    k('v_mul_f32 v%d, v%d, v%d' % (vy + r, a + rr, vst2 + 2 * rr + 1))
                    k('v_fmac_f32 v%d, v%d, v%d' % (vy + r, vcs2 + nb, vst2 + 2 * rr))
                for i in range(4):
                    k('v_cvt_pk_bf16_f32 v%d, v%d, v%d' % (vy + i, vy + 2 * i, vy + 2 * i + 1))
                k('buffer_store_dwordx4 %s, v%d, s[24:27], 0 offen offset:%d' % (
                    vr(vy, 4), vno2 + nb, tb * 2048 + t * 1024))
                k('s_nop 1')
    k.label(L_done)


def epi32_geglu(k, c):
    va = c.va
    vl, vh, vt31 = c.vl, c.vh, c.vt31
    c.main(False)
    fb = c.xf[0][0]
    vcg = c.vt
    vcu = fb
    tg = fb + 16
    tu = fb + 24
    vst = fb + 32
    vx = fb + 36
    vo = fb + 40
    t2 = fb + 44
    vC = fb + 52
    k('s_lshl_b32 s58, s6, 9')
    k('v_lshlrev_b32 v%d, 3, v%d' % (vx, vt31))
    k('v_add_u32 v%d, s58, v%d' % (vx, vx))
    for tb in range(2):
        k('ds_read_b64 %s, v%d offset:%d' % (vr(vst + 2 * tb, 2), vx, c.AUX + tb * 256))
    k('s_lshl_b32 s58, s3, 1')
    k('s_add_u32 s58, s58, s6')
    k('s_mul_i32 s58, s58, 54')
    k('s_lshl_b32 s60, s4, 2')
    k('s_add_u32 s58, s58, s60')
    k('s_lshl_b32 s60, s7, 1')
    k('s_add_u32 s58, s58, s60')
    k('s_lshl_b32 s58, s58, 12')
    k('v_bfe_u32 v%d, v%d, 2, 2' % (vx + 1, vt31))
    k('v_sub_u32 v%d, 0, v%d' % (vx + 1, vx + 1))
    k('v_lshlrev_b32 v%d, 1, v%d' % (vx + 2, vh))
    k('v_xor_b32 v%d, v%d, v%d' % (vx + 1, vx + 1, vx + 2))
    k('v_and_b32 v%d, 3, v%d' % (vx + 1, vx + 1))
    k('v_lshlrev_b32 v%d, 6, v%d' % (vo, vt31))
    k('v_add_u32 v%d, s58, v%d' % (vo, vo))
    k('v_xor_b32 v%d, 1, v%d' % (vx + 2, vx + 1))
    k('v_lshl_add_u32 v%d, v%d, 4, v%d' % (vo + 1, vx + 2, vo))
    k('v_lshl_add_u32 v%d, v%d, 4, v%d' % (vo, vx + 1, vo))
    k('s_lshl_b32 s58, s7, 6')
    k('s_add_u32 s58, s58, s57')
    k('s_cmp_lt_u32 s58, %d' % c.N)
    k('s_cselect_b32 s58, 0, 0x7ff00000')
    k('v_add_u32 v%d, s58, v%d' % (vo, vo))
    k('v_add_u32 v%d, s58, v%d' % (vo + 1, vo + 1))
    C1 = -2.0 * 1.4426950408889634 * 0.7978845608028654
    C2 = C1 * 0.044715
    k('v_mov_b32 v%d, %s' % (vC, fbits(C1)))
    k('v_mov_b32 v%d, %s' % (vC + 1, fbits(C2)))
    k('v_mov_b32 v%d, 1.0' % (vC + 2))
    k('s_lshl_b32 s58, s7, 8')
    k('v_lshlrev_b32 v%d, 6, v%d' % (vx + 1, vh))
    k('v_add_u32 v%d, s58, v%d' % (vx + 1, vx + 1))
    for nb in range(2):
        for j in range(4):
            k('ds_read_b128 %s, v%d offset:%d' % (vr(vcg + 4 * j, 4), vx + 1, c.AUX + c.TM * 8 + nb * 128 + j * 16))
            k('ds_read_b128 %s, v%d offset:%d' % (vr(vcu + 4 * j, 4), vx + 1,
                                                   c.AUX + c.TM * 8 + c.TN * 4 + nb * 128 + j * 16))
        k('s_waitcnt lgkmcnt(0)')
        for tb in range(2):
            ag = c.acc(0, nb, tb)
            au = c.acc(1, nb, tb)
            for half in range(2):
                P = lambda r: 'v[%d:%d]' % (r, r + 1)
                st_ = P(vst + 2 * tb)
                for i in range(0, 8, 2):
                    r = 8 * half + i
                    k('v_pk_mul_f32 %s, %s, %s op_sel:[0,1] op_sel_hi:[1,1]' % (P(tg + i), P(ag + r), st_))
                    k('v_pk_mul_f32 %s, %s, %s op_sel:[0,1] op_sel_hi:[1,1]' % (P(tu + i), P(au + r), st_))
                    k('v_pk_fma_f32 %s, %s, %s, %s op_sel_hi:[1,0,1]' % (P(tg + i), P(vcg + r), st_, P(tg + i)))
                    k('v_pk_fma_f32 %s, %s, %s, %s op_sel_hi:[1,0,1]' % (P(tu + i), P(vcu + r), st_, P(tu + i)))
                for i in range(0, 8, 2):
                    k('v_pk_mul_f32 %s, %s, %s' % (P(t2 + i), P(tg + i), P(tg + i)))
                    k('v_pk_mul_f32 %s, %s, %s' % (P(tu + i), P(tu + i), P(tg + i)))
                    k('v_pk_fma_f32 %s, %s, %s, %s op_sel:[0,1,0] op_sel_hi:[1,1,0]' % (P(t2 + i), P(t2 + i), P(vC), P(vC)))
                    k('v_pk_mul_f32 %s, %s, %s' % (P(t2 + i), P(t2 + i), P(tg + i)))
                for i in range(8):
                    k('v_exp_f32 v%d, v%d' % (t2 + i, t2 + i))
                k('s_nop 0')
                for i in range(0, 8, 2):
                    k('v_pk_add_f32 %s, %s, %s op_sel_hi:[1,0]' % (P(t2 + i), P(t2 + i), P(vC + 2)))
                for i in range(8):
                    k('v_rcp_f32 v%d, v%d' % (t2 + i, t2 + i))
                k('s_nop 0')
                for i in range(0, 8, 2):
                    k('v_pk_mul_f32 %s, %s, %s' % (P(tg + i), P(tu + i), P(t2 + i)))
                for i in range(4):
                    k('v_cvt_pk_bf16_f32 v%d, v%d, v%d' % (tu + i, tg + 2 * i, tg + 2 * i + 1))
                if nb:
                    k('s_movk_i32 s61, 4096')
                k('buffer_store_dwordx4 %s, v%d, s[24:27], %s offen offset:%d' % (
                    vr(tu, 4), vo + half, 's61' if nb else '0', tb * 2048))
                k('s_nop 1')


def qkv_extra(k, lv, vl):
    t = lv.get(8, 4)
    z = lv.get(4, 4)
    d = lv.get(4, 4)
    for i in range(4):
        k('v_mov_b32 v%d, 0' % (z + i))
    k('s_lshl_b32 s58, s2, 2')
    k('s_add_u32 s58, s58, s5')
    mk_srd(k, 24, PTR('ws'), QF_OFF, 12 << 20)
    k('v_lshlrev_b32 v%d, 4, v%d' % (t, vl))
    k('v_mov_b32 v%d, 0x7ffffff0' % (t + 2))
    k('v_cmp_lt_u32 vcc, 31, v%d' % vl)
    k('s_nop 1')
    k('v_cndmask_b32 v%d, v%d, v%d, vcc' % (t + 1, t + 2, t))
    k('v_and_b32 v%d, 31, v%d' % (t + 3, vl))
    k('v_cmp_lt_u32 vcc, 19, v%d' % (t + 3))
    k('s_nop 1')
    k('v_cndmask_b32 v%d, v%d, v%d, vcc' % (t + 4, t + 2, t))
    k('v_mov_b32 v%d, 0x3f803f80' % (t + 5))
    k('v_cmp_eq_u32 vcc, 20, v%d' % (t + 3))
    k('s_nop 1')
    k('v_cndmask_b32 v%d, v%d, v%d, vcc' % (d, z, t + 5))
    for i in range(1, 4):
        k('v_mov_b32 v%d, v%d' % (d + i, d))
    for it in range(5):
        L = k.newlabel('ex')
        k('s_add_u32 s59, s58, %d' % (960 * it))
        k('s_cmp_ge_u32 s59, 4096')
        k('s_cbranch_scc1 %s' % L)
        k('s_lshl_b32 s60, s59, 11')
        k('buffer_store_dwordx2 %s, v%d, s[24:27], s60 offen offset:1032' % (vr(z, 2), t))
        k('buffer_store_dwordx2 %s, v%d, s[24:27], s60 offen offset:1024' % (vr(z, 2), t + 1))
        k('s_lshl_b32 s60, s59, 10')
        k('s_add_u32 s60, s60, 0x800000')
        k('buffer_store_dwordx4 %s, v%d, s[24:27], s60 offen' % (vr(d, 4), t + 4))
        k.label(L)
    for (ptr, off, K, nch, first) in (('A_wo', WOP_OFF, 640, 800, 0), ('w_down', WDP_OFF, 1728, 2160, 800)):
        mk_srd(k, 28, PTR(ptr), 0, KSIZE[ptr])
        mk_srd(k, 32, PTR('ws'), off, KSIZE[ptr])
        for it in range(4):
            lo, hi = 960 * it, 960 * it + 960
            if hi <= first or lo >= first + nch:
                continue
            L = k.newlabel('pk')
            k('s_add_u32 s59, s58, %d' % (960 * it))
            k('s_sub_u32 s59, s59, %d' % first)
            k('s_cmp_ge_u32 s59, %d' % nch)
            k('s_cbranch_scc1 %s' % L)
            k('s_lshl_b32 s59, s59, 6')
            k('v_add_u32 v%d, s59, v%d' % (t, vl))
            k('v_lshlrev_b32 v%d, 4, v%d' % (t + 1, t))
            k('buffer_load_dwordx4 %s, v%d, s[28:31], 0 offen' % (vr(d, 4), t + 1))
            k('s_mov_b32 s60, 52429')
            k('v_mul_lo_u32 v%d, v%d, s60' % (t + 1, t))
            k('v_mul_hi_u32 v%d, v%d, s60' % (t + 2, t))
            k('v_lshrrev_b32 v%d, 22, v%d' % (t + 1, t + 1))
            k('v_lshl_or_b32 v%d, v%d, 10, v%d' % (t + 1, t + 2, t + 1))
            k('v_mul_u32_u24 v%d, 80, v%d' % (t + 2, t + 1))
            k('v_sub_u32 v%d, v%d, v%d' % (t + 2, t, t + 2))
            k('s_movk_i32 s60, 6554')
            k('v_mul_lo_u32 v%d, v%d, s60' % (t + 3, t + 2))
            k('v_lshrrev_b32 v%d, 16, v%d' % (t + 3, t + 3))
            k('v_mul_u32_u24 v%d, 10, v%d' % (t + 4, t + 3))
            k('v_sub_u32 v%d, v%d, v%d' % (t + 4, t + 2, t + 4))
            k('v_mul_u32_u24 v%d, %d, v%d' % (t + 3, K, t + 3))
            k('v_add_u32 v%d, v%d, v%d' % (t + 3, t + 3, t + 1))
            k('v_mul_u32_u24 v%d, 160, v%d' % (t + 3, t + 3))
            k('v_lshl_add_u32 v%d, v%d, 4, v%d' % (t + 3, t + 4, t + 3))
            k('s_waitcnt vmcnt(0)')
            k('buffer_store_dwordx4 %s, v%d, s[32:35], 0 offen' % (vr(d, 4), t + 3))
            k('s_nop 1')
            k.label(L)
```

```python
from common import *

NA = 172
NWG_PREP = NA + 512 + 740
E0 = NA + 512


def prep_kernel():
    k = Kern('prep_kernel')
    L_end = k.newlabel('end')
    L_b = k.newlabel('roleb')
    L_c = k.newlabel('rolec')
    L_d = k.newlabel('roled')
    k('s_cmp_ge_u32 s2, %d' % NWG_PREP)
    k('s_cbranch_scc1 %s' % L_end)
    import os
    if os.environ.get('PLO'):
        k('s_cmp_lt_u32 s2, %s' % os.environ['PLO'])
        k('s_cbranch_scc1 %s' % L_end)
        k('s_cmp_ge_u32 s2, %s' % os.environ['PHI'])
        k('s_cbranch_scc1 %s' % L_end)
    load_ptr(k, 20, 'ws')
    k('s_cmp_ge_u32 s2, %d' % NA)
    k('s_cbranch_scc1 %s' % L_b)
    L_g = k.newlabel('ag')
    L_u = k.newlabel('au')
    L_go = k.newlabel('ago')
    k('s_and_b32 s31, s2, 3')
    k('s_lshr_b32 s26, s2, 2')
    k('s_cmp_ge_u32 s26, 15')
    k('s_cbranch_scc1 %s' % L_g)
    load_ptr(k, 4, 'A_wqkv')
    k('s_mov_b32 s24, 3840')
    k('s_mov_b32 s25, %d' % KSIZE['A_wqkv'])
    k('s_mov_b32 s27, 0')
    k('s_branch %s' % L_go)
    k.label(L_g)
    k('s_cmp_ge_u32 s26, 29')
    k('s_cbranch_scc1 %s' % L_u)
    load_ptr(k, 4, 'w_gate')
    k('s_mov_b32 s24, 3456')
    k('s_mov_b32 s25, %d' % KSIZE['w_gate'])
    k('s_sub_u32 s26, s26, 15')
    k('s_mov_b32 s27, 1920')
    k('s_branch %s' % L_go)
    k.label(L_u)
    load_ptr(k, 4, 'w_up')
    k('s_mov_b32 s24, 3456')
    k('s_mov_b32 s25, %d' % KSIZE['w_up'])
    k('s_sub_u32 s26, s26, 29')
    k('s_mov_b32 s27, %d' % (1920 + 1728))
    k.label(L_go)
    k('s_waitcnt lgkmcnt(0)')
    k('s_mov_b32 s8, s4')
    k('s_and_b32 s9, s5, 0xffff')
    k('s_mov_b32 s10, s25')
    k('s_mov_b32 s11, 0x20000')
    mk_srd(k, 12, 20, CS_OFF, 4 * 5376 * 4)
    k('v_and_b32 v1, 15, v0')
    k('v_lshrrev_b32 v2, 4, v0')
    k('s_mul_i32 s28, s24, 10')
    k('v_mul_lo_u32 v3, v2, s28')
    k('v_lshl_add_u32 v3, v1, 4, v3')
    k('s_lshl_b32 s29, s26, 8')
    k('s_mul_i32 s30, s31, 160')
    k('s_mul_i32 s30, s30, s24')
    k('s_add_u32 s30, s30, s29')
    for i in range(10):
        k('buffer_load_dwordx4 v[%d:%d], v3, s[8:11], s30 offen' % (16 + 4 * i, 19 + 4 * i))
        k('s_add_u32 s30, s30, s24')
    for i in range(8):
        k('v_mov_b32 v%d, 0' % (8 + i))
    for i in range(10):
        k('s_waitcnt vmcnt(%d)' % (9 - i))
        for d in range(4):
            k('v_lshlrev_b32 v4, 16, v%d' % (16 + 4 * i + d))
            k('v_and_b32 v5, 0xffff0000, v%d' % (16 + 4 * i + d))
            k('v_add_f32 v%d, v%d, v4' % (8 + 2 * d, 8 + 2 * d))
            k('v_add_f32 v%d, v%d, v5' % (9 + 2 * d, 9 + 2 * d))
    k('v_lshlrev_b32 v6, 5, v0')
    k('ds_write_b128 v6, v[8:11]')
    k('ds_write_b128 v6, v[12:15] offset:16')
    k('s_waitcnt lgkmcnt(0)')
    k('s_barrier')
    L_a_done = k.newlabel('adone')
    k('s_lshl_b32 s29, s26, 7')
    k('v_add_u32 v7, s29, v0')
    k('s_lshr_b32 s28, s24, 1')
    k('v_cmp_gt_u32 s[34:35], s28, v7')
    k('v_cmp_gt_u32 vcc, 128, v0')
    k('s_and_b64 vcc, vcc, s[34:35]')
    k('s_and_saveexec_b64 s[32:33], vcc')
    k('s_cbranch_execz %s' % L_a_done)
    k('v_lshlrev_b32 v6, 2, v0')
    for ty in range(16):
        k('ds_read_b32 v%d, v6 offset:%d' % (16 + ty, ty * 512))
    k('s_waitcnt lgkmcnt(0)')
    for ty in range(1, 16):
        k('v_add_f32 v16, v16, v%d' % (16 + ty))
    k('s_mul_i32 s29, s31, 5376')
    k('s_add_u32 s29, s29, s27')
    k('v_add_u32 v7, s29, v7')
    k('v_lshlrev_b32 v7, 2, v7')
    k('buffer_store_dword v16, v7, s[12:15], 0 offen')
    k.label(L_a_done)
    k('s_mov_b64 exec, s[32:33]')
    k('s_branch %s' % L_end)

    k.label(L_b)
    k('s_cmp_ge_u32 s2, %d' % (NA + 512))
    k('s_cbranch_scc1 %s' % L_c)
    load_ptr(k, 4, 'A_x')
    k('s_waitcnt lgkmcnt(0)')
    mk_srd(k, 8, 4, 0, KSIZE['A_x'])
    mk_srd(k, 12, 20, ST_OFF, 2048 * 64)
    k('s_sub_u32 s24, s2, %d' % NA)
    k('s_lshl_b32 s24, s24, 2')
    k('v_lshrrev_b32 v1, 6, v0')
    k('v_and_b32 v2, 63, v0')
    k('v_add_u32 v1, s24, v1')
    k('v_mul_u32_u24 v3, 1280, v1')
    k('v_lshl_add_u32 v4, v2, 3, v3')
    k('v_lshl_add_u32 v5, v2, 2, v3')
    k('buffer_load_dwordx2 v[8:9], v4, s[8:11], 0 offen')
    k('buffer_load_dwordx2 v[10:11], v4, s[8:11], 0 offen offset:512')
    k('buffer_load_dword v12, v5, s[8:11], 0 offen offset:1024')
    k('v_mov_b32 v14, 0')
    k('v_mov_b32 v15, 0')
    k('s_waitcnt vmcnt(0)')
    for i in range(5):
        k('v_lshlrev_b32 v6, 16, v%d' % (8 + i))
        k('v_and_b32 v7, 0xffff0000, v%d' % (8 + i))
        k('v_add_f32 v14, v14, v6')
        k('v_fmac_f32 v15, v6, v6')
        k('v_add_f32 v14, v14, v7')
        k('v_fmac_f32 v15, v7, v7')
    for sh in (1, 2, 4, 8, 16, 32):
        k('v_xor_b32 v6, %d, v2' % sh)
        k('v_lshlrev_b32 v6, 2, v6')
        k('ds_bpermute_b32 v16, v6, v14')
        k('ds_bpermute_b32 v17, v6, v15')
        k('s_waitcnt lgkmcnt(0)')
        k('v_add_f32 v14, v14, v16')
        k('v_add_f32 v15, v15, v17')
    k('v_mov_b32 v16, 0')
    k('v_cmp_eq_u32 vcc, 0, v2')
    k('s_nop 1')
    k('v_cndmask_b32 v16, v16, v14, vcc')
    k('v_cmp_eq_u32 vcc, 1, v2')
    k('s_nop 1')
    k('v_cndmask_b32 v16, v16, v15, vcc')
    k('v_lshlrev_b32 v6, 6, v1')
    k('v_lshl_add_u32 v6, v2, 2, v6')
    L_b_done = k.newlabel('bdone')
    k('v_cmp_gt_u32 vcc, 16, v2')
    k('s_and_saveexec_b64 s[32:33], vcc')
    k('s_cbranch_execz %s' % L_b_done)
    k('buffer_store_dword v16, v6, s[12:15], 0 offen')
    k.label(L_b_done)
    k('s_mov_b64 exec, s[32:33]')
    k('s_branch %s' % L_end)

    k.label(L_c)
    k('s_branch %s' % L_d)
    k('s_waitcnt lgkmcnt(0)')
    mk_srd(k, 12, 20, QF_OFF, 8 << 20)
    k('s_sub_u32 s24, s2, %d' % (NA + 512))
    k('s_lshl_b32 s24, s24, 4')
    k('v_lshrrev_b32 v1, 4, v0')
    k('v_add_u32 v1, s24, v1')
    k('v_lshlrev_b32 v1, 11, v1')
    k('v_and_b32 v2, 15, v0')
    k('v_lshl_add_u32 v1, v2, 6, v1')
    for i in range(4):
        k('v_mov_b32 v%d, 0' % (4 + i))
    for i in range(4):
        k('buffer_store_dwordx4 v[4:7], v1, s[12:15], 0 offen offset:%d' % (1024 + i * 16))
    k('s_branch %s' % L_end)

    k.label(L_d)
    L_e = k.newlabel('rolee')
    k('s_cmp_ge_u32 s2, %d' % E0)
    k('s_cbranch_scc1 %s' % L_e)
    k('s_waitcnt lgkmcnt(0)')
    mk_srd(k, 12, 20, VF_OFF, 4 << 20)
    k('s_sub_u32 s24, s2, %d' % (NA + 512 + 256))
    k('s_lshl_b32 s24, s24, 5')
    k('v_lshrrev_b32 v1, 3, v0')
    k('v_add_u32 v1, s24, v1')
    k('v_lshlrev_b32 v1, 10, v1')
    k('v_and_b32 v2, 3, v0')
    k('v_mul_u32_u24 v3, 48, v2')
    k('v_add_u32 v1, v1, v3')
    k('v_and_b32 v3, 4, v0')
    k('v_lshl_add_u32 v1, v3, 7, v1')
    k('v_mov_b32 v8, 0x3f803f80')
    k('v_cmp_eq_u32 vcc, 0, v2')
    k('v_mov_b32 v4, 0')
    k('s_nop 1')
    k('v_cndmask_b32 v8, v4, v8, vcc')
    k('v_mov_b32 v9, v8')
    k('v_mov_b32 v10, v8')
    k('v_mov_b32 v11, v8')
    k('v_mov_b32 v5, 0')
    k('v_mov_b32 v6, 0')
    k('v_mov_b32 v7, 0')
    k('buffer_store_dwordx4 v[8:11], v1, s[12:15], 0 offen offset:320')
    k('buffer_store_dwordx4 v[4:7], v1, s[12:15], 0 offen offset:336')
    k('buffer_store_dwordx4 v[4:7], v1, s[12:15], 0 offen offset:352')
    k('s_branch %s' % L_end)

    k.label(L_e)
    L_e2 = k.newlabel('rolee2')
    L_e3 = k.newlabel('rolee3')
    k('s_sub_u32 s24, s2, %d' % E0)
    k('s_cmp_ge_u32 s24, 200')
    k('s_cbranch_scc1 %s' % L_e2)
    load_ptr(k, 4, 'A_wo')
    k('s_mov_b32 s25, %d' % KSIZE['A_wo'])
    k('s_mov_b32 s26, 0x%x' % WOP_OFF)
    k('s_mov_b32 s27, 640')
    k('s_branch %s' % L_e3)
    k.label(L_e2)
    load_ptr(k, 4, 'w_down')
    k('s_sub_u32 s24, s24, 200')
    k('s_mov_b32 s25, %d' % KSIZE['w_down'])
    k('s_mov_b32 s26, 0x%x' % WDP_OFF)
    k('s_mov_b32 s27, 1728')
    k.label(L_e3)
    k('s_waitcnt lgkmcnt(0)')
    k('s_mov_b32 s8, s4')
    k('s_and_b32 s9, s5, 0xffff')
    k('s_mov_b32 s10, s25')
    k('s_mov_b32 s11, 0x20000')
    k('s_add_u32 s12, s20, s26')
    k('s_addc_u32 s13, s21, 0')
    k('s_and_b32 s13, s13, 0xffff')
    k('s_mov_b32 s14, s25')
    k('s_mov_b32 s15, 0x20000')
    k('s_lshl_b32 s24, s24, 8')
    k('v_add_u32 v1, s24, v0')
    k('v_lshlrev_b32 v2, 4, v1')
    k('buffer_load_dwordx4 v[8:11], v2, s[8:11], 0 offen')
    k('s_mov_b32 s28, 52429')
    k('v_mul_lo_u32 v3, v1, s28')
    k('v_mul_hi_u32 v4, v1, s28')
    k('v_lshrrev_b32 v3, 22, v3')
    k('v_lshl_or_b32 v3, v4, 10, v3')
    k('v_mul_u32_u24 v4, 80, v3')
    k('v_sub_u32 v4, v1, v4')
    k('s_movk_i32 s28, 6554')
    k('v_mul_lo_u32 v5, v4, s28')
    k('v_lshrrev_b32 v5, 16, v5')
    k('v_mul_u32_u24 v6, 10, v5')
    k('v_sub_u32 v6, v4, v6')
    k('v_mul_lo_u32 v5, v5, s27')
    k('v_add_u32 v5, v5, v3')
    k('v_mul_u32_u24 v5, 160, v5')
    k('v_lshl_add_u32 v5, v6, 4, v5')
    k('s_waitcnt vmcnt(0)')
    k('buffer_store_dwordx4 v[8:11], v5, s[12:15], 0 offen')
    k.label(L_end)
    k('s_endpgm')
    return k, 64, 0
```

```python
from common import *
from gemm import fbits, PTR, Ctx
import os
STAMP = os.environ.get('STAMP')


def gemmsk_kernel(name, *, K, NB, xsrc, XS, wsrc, resid, dst, want_stats=True):
    k = Kern(name)
    TM, TN, N, WS = 64, 80, 640, 1280
    mtiles, ntiles = 32, 8
    NWG = mtiles * ntiles
    S = K // 32
    base, rem = S // 4, S % 4
    XB = 4096
    WB = 5120
    STAGE = XB + WB
    WV = NB * STAGE
    LDS = max(4 * WV, 4 * 20480)
    DPW = 9
    nnb, ntb, npair = 5, 4, 3

    L_end = k.newlabel('end')
    k('s_cmp_ge_u32 s2, %d' % NWG)
    k('s_cbranch_scc1 %s' % L_end)
    if STAMP:
        k('s_memtime s[84:85]')
        k('s_memrealtime s[94:95]')
    k('s_load_dwordx16 s[64:79], s[0:1], 0')
    k('s_load_dwordx4 s[80:83], s[0:1], 64')
    k('s_and_b32 s3, s2, %d' % (mtiles - 1))
    k('s_lshr_b32 s4, s2, 5')
    va = VAlloc(1)
    vl = va.get()
    k('v_and_b32 v%d, 63, v0' % vl)
    k('v_lshrrev_b32 v2, 6, v0')
    va.get()
    k('s_nop 0')
    k('v_readfirstlane_b32 s5, v2')
    k('s_lshl_b32 s56, s3, 6')
    k('s_mul_i32 s57, s4, %d' % TN)
    k('s_min_u32 s58, s5, %d' % rem)
    k('s_mul_i32 s59, s5, %d' % base)
    k('s_add_u32 s59, s59, s58')
    k('s_cmp_lt_u32 s5, %d' % rem)
    k('s_cselect_b32 s55, %d, %d' % (base + 1, base))
    ta = va.get()
    tb_ = va.get()
    vxd = va.get()
    vwd = va.get()
    k('v_lshlrev_b32 v%d, 4, v%d' % (vxd, vl))
    k('s_mul_i32 s48, s3, %d' % S)
    k('s_add_u32 s48, s48, s59')
    k('s_lshl_b32 s48, s48, 12')
    k('s_mul_i32 s49, s4, %d' % K)
    k('s_lshl_b32 s58, s59, 5')
    k('s_add_u32 s49, s49, s58')
    k('s_mul_i32 s49, s49, 160')
    k('s_mul_i32 s52, s5, %d' % WV)
    k('s_add_u32 s53, s52, %d' % WV)
    k('s_mov_b32 s50, s52')
    k('s_mov_b32 s51, s52')
    k('s_waitcnt lgkmcnt(0)')

    def srd_of(sd, src):
        if src[0] == 'ptr':
            mk_srd(k, sd, PTR(src[1]), 0, KSIZE[src[1]])
        else:
            mk_srd(k, sd, PTR('ws'), src[1], src[2])
    srd_of(8, xsrc)
    mk_srd(k, 12, PTR('ws'), wsrc, K * 1280)

    def dma_ops():
        ops = [['s_mov_b32 m0, s50', 's_nop 0', 'buffer_load_dwordx4 v%d, s[8:11], s48 offen lds' % vxd]]
        for j in range(1, 4):
            ops.append('buffer_load_dwordx4 v%d, s[8:11], s48 offen offset:%d lds' % (vxd, j * 1024))
        ops.append(['s_add_u32 m0, s50, %d' % XB, 's_nop 0', 'buffer_load_dwordx4 v%d, s[12:15], s49 offen lds' % vxd])
        for q in range(1, 4):
            ops.append('buffer_load_dwordx4 v%d, s[12:15], s49 offen offset:%d lds' % (vxd, q * 1024))
        ops.append(['s_add_u32 m0, s50, %d' % (XB + 4096), 's_add_u32 s54, s49, 4096',
                    'buffer_load_dwordx4 v%d, s[12:15], s54 offen lds' % vxd])
        ops.append(['s_add_u32 s48, s48, 4096', 's_add_u32 s49, s49, 5120',
                    's_add_u32 s50, s50, %d' % STAGE, 's_cmp_eq_u32 s50, s53', 's_cselect_b32 s50, s52, s50'])
        return ops

    assert base >= NB
    for s in range(NB):
        emit_list(k, dma_ops())

    srd_of(24, dst)
    srd_of(28, resid)
    mk_srd(k, 20, PTR('ws'), 0, 0x100000)
    vg = va.get()
    k('v_lshrrev_b32 v%d, 4, v%d' % (vg, vl))
    vres = va.get(npair * 4, 4)
    vra = va.get()
    vrb = va.get()
    k('s_lshl_b32 s58, s5, 4')
    k('s_add_u32 s58, s58, s56')
    k('v_and_b32 v%d, 15, v%d' % (vra, vl))
    k('v_add_u32 v%d, s58, v%d' % (vra, vra))
    k('v_mul_u32_u24 v%d, %d, v%d' % (vra, N * 2, vra))
    k('v_lshl_add_u32 v%d, v%d, 4, v%d' % (vra, vg, vra))
    k('s_lshl_b32 s58, s57, 1')
    k('v_add_u32 v%d, s58, v%d' % (vra, vra))
    k('v_lshlrev_b32 v%d, 3, v%d' % (vrb, vg))
    k('v_sub_u32 v%d, v%d, v%d' % (vrb, vra, vrb))
    k('buffer_load_dwordx4 %s, v%d, s[28:31], 0 offen' % (vr(vres, 4), vra))
    k('buffer_load_dwordx4 %s, v%d, s[28:31], 0 offen offset:64' % (vr(vres + 4, 4), vra))
    k('buffer_load_dwordx2 %s, v%d, s[28:31], 0 offen offset:128' % (vr(vres + 8, 2), vrb))
    NRES = 3

    vxr = va.get()
    vwr = [va.get() for _ in range(npair)]
    vxa = va.get()
    vwa = [va.get() for _ in range(npair)]
    k('v_and_b32 v%d, 15, v%d' % (ta, vl))
    k('v_lshrrev_b32 v%d, 2, v%d' % (tb_, ta))
    k('v_sub_u32 v%d, 0, v%d' % (tb_, tb_))
    k('v_xor_b32 v%d, v%d, v%d' % (tb_, tb_, vg))
    k('v_and_b32 v%d, 3, v%d' % (tb_, tb_))
    k('v_lshlrev_b32 v%d, 6, v%d' % (vxr, ta))
    k('v_lshl_add_u32 v%d, v%d, 4, v%d' % (vxr, tb_, vxr))
    vrr = va.get()
    k('v_bfe_u32 v%d, v%d, 2, 2' % (vrr, vl))
    for p in range(npair):
        k('v_lshl_add_u32 v%d, v%d, 3, v%d' % (ta, vg, vrr))
        k('v_mul_u32_u24 v%d, 160, v%d' % (ta, ta))
        k('v_and_b32 v%d, 3, v%d' % (tb_, vl))
        k('v_lshl_add_u32 v%d, v%d, %d, v%d' % (ta, tb_, 4 if 2 * p + 1 < nnb else 3, ta))
        k('v_add_u32 v%d, %d, v%d' % (vwr[p], XB + p * 64, ta))

    xf = [[va.get(4, 4) for _ in range(ntb)] for _ in range(2)]
    wf = [[va.get(4, 4) for _ in range(nnb)] for _ in range(2)]
    accb = va.get(80, 4)
    acc = lambda nb, tb: accb + (tb * nnb + nb) * 4
    for i in range(80):
        k('v_mov_b32 v%d, 0' % (accb + i))

    def read_ops(st):
        ops = ['ds_read_b128 %s, v%d offset:%d' % (vr(xf[st][tb], 4), vxa, tb * 1024) for tb in range(ntb)]
        for nb in range(nnb):
            p, b = nb // 2, nb % 2
            for i in range(2):
                ops.append('ds_read_b64_tr_b16 %s, v%d offset:%d' % (vr(wf[st][nb] + 2 * i, 2), vwa[p], i * 640 + 8 * b))
        return ops

    def addr_ops():
        ops = ['v_add_u32 v%d, s51, v%d' % (vxa, vxr)]
        ops += ['v_add_u32 v%d, s51, v%d' % (vwa[p], vwr[p]) for p in range(npair)]
        ops += ['s_add_u32 s51, s51, %d' % STAGE, 's_cmp_eq_u32 s51, s53', 's_cselect_b32 s51, s52, s51']
        return ops

    def mfma_ops(st):
        return ['v_mfma_f32_16x16x32_bf16 %s, %s, %s, %s' % (vr(acc(nb, tb), 4), vr(wf[st][nb], 4), vr(xf[st][tb], 4),
                                                             vr(acc(nb, tb), 4))
                for nb in range(nnb) for tb in range(ntb)]

    k('s_waitcnt vmcnt(%d)' % ((NB - 1) * DPW + NRES))
    emit_list(k, addr_ops())
    emit_list(k, read_ops(0))
    k('s_waitcnt lgkmcnt(0)')
    if STAMP:
        k('s_memtime s[86:87]')
    first = [True]

    def step(st):
        Lt = k.newlabel('tail')
        Lj = k.newlabel('join')
        k('s_cmp_le_u32 s55, %d' % NB)
        k('s_cbranch_scc1 %s' % Lt)
        k('s_waitcnt vmcnt(%d)' % ((NB - 2) * DPW))
        emit_list(k, addr_ops())
        mem = ([] if os.environ.get('NOREAD') else read_ops(1 - st)) + ([] if os.environ.get('NODMA') else dma_ops()) + ['s_nop 0', 's_nop 0']
        if os.environ.get('DMAFIRST'):
            d_ = dma_ops()
            r_ = read_ops(1 - st)
            emit_list(k, d_)
            emit_list(k, r_[:2])
            emit_list(k, interleave(mfma_ops(st), r_[2:]))
        else:
            emit_list(k, mem[:2])
            emit_list(k, interleave(mfma_ops(st), mem[2:]))
        k('s_branch %s' % Lj)
        k.label(Lt)
        k('s_waitcnt vmcnt(0)')
        emit_list(k, addr_ops())
        mem = read_ops(1 - st)
        emit_list(k, mem[:2])
        emit_list(k, interleave(mfma_ops(st), mem[2:]))
        k.label(Lj)
        k('s_waitcnt lgkmcnt(0)')
        k('s_sub_u32 s55, s55, 1')
        k('s_cmp_eq_u32 s55, 1')

    Lloop = k.newlabel('loop')
    LlastB = k.newlabel('lastB')
    Ldone = k.newlabel('done')
    k.label(Lloop)
    step(0)
    k('s_cbranch_scc1 %s' % LlastB)
    step(1)
    k('s_cbranch_scc0 %s' % Lloop)
    emit_list(k, mfma_ops(0))
    k('s_branch %s' % Ldone)
    k.label(LlastB)
    emit_list(k, mfma_ops(1))
    k.label(Ldone)
    if STAMP:
        k('s_memtime s[88:89]')
    k('s_nop 7')
    k('s_barrier')
    vo16 = va.get()
    k('v_lshlrev_b32 v%d, 4, v%d' % (vo16, vl))
    k('s_mul_i32 s58, s5, 20480')
    k('v_add_u32 v%d, s58, v%d' % (ta, vo16))
    for tb in range(ntb):
        for nb in range(nnb):
            k('ds_write_b128 v%d, %s offset:%d' % (ta, vr(acc(nb, tb), 4), (tb * nnb + nb) * 1024))
    k('s_waitcnt lgkmcnt(0)')
    k('s_barrier')
    k('s_mul_i32 s58, s5, 5120')
    k('v_add_u32 v%d, s58, v%d' % (ta, vo16))
    red = xf[0][0]
    k('v_add_u32 v%d, 40960, v%d' % (tb_, ta))
    for w in range(4):
        for nb in range(nnb):
            dstr = accb + nb * 4 if w == 0 else red + ((w - 1) * nnb + nb) * 4
            k('ds_read_b128 %s, v%d offset:%d' % (vr(dstr, 4), ta if w < 2 else tb_, (w & 1) * 20480 + nb * 1024))
    k('s_waitcnt lgkmcnt(0)')
    for nb in range(nnb):
        for i in range(4):
            for w in range(3):
                k('v_add_f32 v%d, v%d, v%d' % (accb + nb * 4 + i, accb + nb * 4 + i, red + (w * nnb + nb) * 4 + i))
    t = accb + 24
    vs = accb + 32
    vx = accb + 36
    k('v_mov_b32 v%d, 0' % vs)
    k('v_mov_b32 v%d, 0' % (vs + 1))
    for p in range(npair):
        full = 2 * p + 1 < nnb
        res = vres + p * 4
        nbk = 2 if full else 1
        for b in range(nbk):
            a = accb + (2 * p + b) * 4
            for i in range(4):
                src = res + 2 * b + i // 2
                if i % 2 == 0:
                    k('v_lshlrev_b32 v%d, 16, v%d' % (vx, src))
                else:
                    k('v_and_b32 v%d, 0xffff0000, v%d' % (vx, src))
                k('v_add_f32 v%d, v%d, v%d' % (t + 4 * b + i, a + i, vx))
        for b in range(nbk):
            k('v_cvt_pk_bf16_f32 v%d, v%d, v%d' % (res + 2 * b, t + 4 * b, t + 4 * b + 1))
            k('v_cvt_pk_bf16_f32 v%d, v%d, v%d' % (res + 2 * b + 1, t + 4 * b + 2, t + 4 * b + 3))
        if full:
            k('buffer_store_dwordx4 %s, v%d, s[24:27], 0 offen offset:%d' % (vr(res, 4), vra, p * 64))
        else:
            k('buffer_store_dwordx2 %s, v%d, s[24:27], 0 offen offset:%d' % (vr(res, 2), vrb, p * 64))
        if want_stats:
            for i in range(2 * nbk):
                k('v_lshlrev_b32 v%d, 16, v%d' % (vx, res + i))
                k('v_and_b32 v%d, 0xffff0000, v%d' % (vx + 2, res + i))
                k('v_add_f32 v%d, v%d, v%d' % (vs, vs, vx))
                k('v_fmac_f32 v%d, v%d, v%d' % (vs + 1, vx, vx))
                k('v_add_f32 v%d, v%d, v%d' % (vs, vs, vx + 2))
                k('v_fmac_f32 v%d, v%d, v%d' % (vs + 1, vx + 2, vx + 2))
    if want_stats:
        for op in ('v_permlane16_swap_b32', 'v_permlane32_swap_b32'):
            k('v_mov_b32 v%d, v%d' % (vx, vs))
            k('v_mov_b32 v%d, v%d' % (vx + 1, vs + 1))
            k('s_nop 1')
            k('%s v%d, v%d' % (op, vs, vx))
            k('%s v%d, v%d' % (op, vs + 1, vx + 1))
            k('v_add_f32 v%d, v%d, v%d' % (vs, vs, vx))
            k('v_add_f32 v%d, v%d, v%d' % (vs + 1, vs + 1, vx + 1))
        k('s_lshl_b32 s58, s5, 4')
        k('s_add_u32 s58, s58, s56')
        k('v_add_u32 v%d, s58, v%d' % (vx, vl))
        k('v_lshlrev_b32 v%d, 6, v%d' % (vx, vx))
        k('s_lshl_b32 s58, s4, 3')
        k('s_add_u32 s58, s58, 0x%x' % ST_OFF)
        k('v_add_u32 v%d, s58, v%d' % (vx, vx))
        L1 = k.newlabel('st')
        k('v_cmp_gt_u32 vcc, 16, v%d' % vl)
        k('s_and_saveexec_b64 s[60:61], vcc')
        k('s_cbranch_execz %s' % L1)
        k('buffer_store_dwordx2 %s, v%d, s[20:23], 0 offen' % (vr(vs, 2), vx))
        k.label(L1)
        k('s_mov_b64 exec, s[60:61]')
    if STAMP:
        k('s_waitcnt vmcnt(0)')
        k('s_memtime s[90:91]')
        k('s_memrealtime s[92:93]')
        k('s_waitcnt lgkmcnt(0)')
        Ls = k.newlabel('st')
        k('s_cmp_lg_u32 s2, %s' % STAMP)
        k('s_cbranch_scc1 %s' % Ls)
        k('s_cmp_lg_u32 s5, 0')
        k('s_cbranch_scc1 %s' % Ls)
        mk_srd(k, 8, PTR('dbg'), 0, 256)
        k('s_sub_u32 s92, s92, s94')
        k('s_add_u32 s92, s92, s84')
        for i in range(1, 5):
            k('s_sub_u32 s%d, s%d, s84' % (84 + 2 * i, 84 + 2 * i))
            k('v_mov_b32 v1, s%d' % (84 + 2 * i))
            k('v_mov_b32 v2, 0')
            k('buffer_store_dword v1, v2, s[8:11], 0 offen offset:%d' % (4 * i))
        k.label(Ls)
    k.label(L_end)
    k('s_endpgm')
    return k, va.n, 0, LDS, NWG
```

```python
import sys
import os
sys.path.insert(0, os.path.dirname(os.path.abspath(__file__)))
from common import *
from prep import prep_kernel, NWG_PREP
from gemm import *
from attn import attn_kernel
from gemm32 import *
from gemmsk import gemmsk_kernel

XSZ = S_TOK * D * 2


def build():
    kerns = []
    launches = []


    k, nv, na = prep_kernel()
    kerns.append((k, nv, na))
    L_prep = (k.name, NWG_PREP, 256, 8192)

    def qkv(name, xsrc, extra=None):
        k, nv, na, lds, nwg = gemm32_kernel(
            name, K=640, NB=int(os.environ.get('QNB', '4')), mtiles=16, ntiles=15, xsrc=xsrc, XS=1280,
            wsrcs=['A_wqkv'], WS=3840, N=1920, epi=epi32_qkv, cs_base=(0,), extra=extra)
        kerns.append((k, nv, na))
        return (k.name, nwg, 512, lds)

    def oproj(name, resid, dst):
        k, nv, na, lds, nwg = gemmsk_kernel(name, K=640, NB=int(os.environ.get('SKNB', '4')), xsrc=('ws', O_OFF, XSZ), XS=1280, wsrc=WOP_OFF,
                                            resid=resid, dst=dst)
        kerns.append((k, nv, na))
        return (k.name, nwg, 256, lds)

    def geglu(name, xsrc):
        k, nv, na, lds, nwg = gemm32_kernel(
            name, K=640, NB=3, mtiles=16, ntiles=14, xsrc=xsrc, XS=1280,
            wsrcs=['w_gate', 'w_up'], WS=3456, N=1728, epi=epi32_geglu, cs_base=(1920, 1920 + 1728),
            dst=('ws', H_OFF, S_TOK * DF * 2), proto=int(os.environ.get('GPROTO', '1')), xcdmap=True)
        kerns.append((k, nv, na))
        return (k.name, nwg, 512, lds)

    def down(name, resid, dst, want_stats=True):
        k, nv, na, lds, nwg = gemmsk_kernel(name, K=1728, NB=int(os.environ.get('SKNB', '4')), xsrc=('ws', H_OFF, S_TOK * DF * 2), XS=3456,
                                            wsrc=WDP_OFF, resid=resid, dst=dst, want_stats=want_stats)
        kerns.append((k, nv, na))
        return (k.name, nwg, 256, lds)

    k, nv, na, lds, nwg = attn_kernel()
    kerns.append((k, nv, na))
    L_attn = (k.name, nwg, 512, lds)

    X0 = ('ptr', 'A_x')
    X1 = ('ws', X1_OFF, XSZ)
    X2 = ('ws', X2_OFF, XSZ)
    OUT = ('ptr', 'out')
    L_g = geglu('geglu_kernel', X1)
    launches = [
        L_prep,
        qkv('qkv0_kernel', X0), L_attn, oproj('oproj0_kernel', X0, X1), L_g, down('down0_kernel', X1, X2),
        qkv('qkv1_kernel', X2), L_attn, oproj('oproj1_kernel', X2, X1), L_g,
        down('down1_kernel', X1, OUT, want_stats=False),
    ]
    ref = open(os.path.join(os.path.dirname(os.path.abspath(__file__)), '..', 'cdna_kernels',
                            'interleave_layers__mha_block__glu_gated_geglu__prompt.s.ref')).read()
    head = []
    for ln in ref.split('\n'):
        if ln.startswith('; @launch'):
            break
        head.append(ln)
    out = head[:]
    for (n, g, b, lds) in launches:
        out.append('; @launch kernel=%s grid=(%d,1,1) block=(%d,1,1) lds=%d' % (n, g, b, lds))
    out.append('.amdgcn_target "amdgcn-amd-amdhsa--gfx950"')
    out.append('.text')
    descs = []
    for (k, nv, na) in kerns:
        body, desc = finish(k, nv, na)
        out.append(body)
        descs.append(desc)
        print('%-16s vgpr %3d agpr %3d lines %d' % (k.name, nv, na, len(k.lines)), file=sys.stderr)
    out.append('.section .rodata,"a"')
    for d in descs:
        out.append('.p2align 6')
        out.append(d)
    txt = '\n'.join(out) + '\n'
    if os.environ.get('RT'):
        lines = txt.split('\n')
        outl = []
        kid = -1
        for ln in lines:
            if ln.endswith('_kernel:') and not ln.startswith(' '):
                kid += 1
                outl.append(ln)
                outl.append('    s_memrealtime s[96:97]')
                outl.append('    s_load_dwordx2 s[98:99], s[0:1], 72')
                continue
            if ln.strip() == 's_endpgm':
                outl += ['    s_waitcnt vmcnt(0) lgkmcnt(0)', '    s_memrealtime s[100:101]',
                         '    s_mov_b64 exec, -1',
                         '    s_add_u32 s8, s98, 0x%x' % (0x3000000 + kid * 0x40000), '    s_addc_u32 s9, s99, 0',
                         '    s_and_b32 s9, s9, 0xffff', '    s_mov_b32 s10, 0x40000', '    s_mov_b32 s11, 0x20000',
                         '    s_waitcnt lgkmcnt(0)',
                         '    v_lshrrev_b32 v1, 6, v0', '    s_lshl_b32 s12, s2, 4', '    v_add_u32 v1, s12, v1',
                         '    v_lshlrev_b32 v1, 3, v1', '    v_mov_b32 v2, s96', '    v_mov_b32 v3, s100',
                         '    buffer_store_dwordx2 v[2:3], v1, s[8:11], 0 offen']
            outl.append(ln)
        txt = '\n'.join(outl)
    fl = os.environ.get('STFLAG')
    if fl:
        import re
        txt = re.sub(r'(buffer_store_dword\w* [^\n]*)', lambda m: m.group(1) + ' ' + fl, txt)
    return txt


if __name__ == '__main__':
    dst = sys.argv[1] if len(sys.argv) > 1 else os.path.join(
        os.path.dirname(os.path.abspath(__file__)), '..', 'cdna_kernels',
        'interleave_layers__mha_block__glu_gated_geglu__prompt.s')
    open(dst, 'w').write(build())
```
